```python
import torch

def _softmax(x, axis=-1):
    return torch.softmax(x, dim=axis)
def _gelu(x):
    return torch.nn.functional.gelu(x, approximate="tanh")
def _silu(x):
    return torch.nn.functional.silu(x)
def _sigmoid(x):
    return torch.sigmoid(x)
def _layernorm(x, axis=-1, eps=1e-5):
    m = x.mean(dim=axis, keepdim=True)
    v = x.var(dim=axis, keepdim=True, unbiased=False)
    return (x - m) / torch.sqrt(v + eps)
def _scatter_add(tgt, idx, src, axis=0):
    return tgt.clone().index_add_(axis, idx, src)
def _segment_sum(src, seg, n):
    out = torch.zeros((n,) + src.shape[1:], dtype=src.dtype)
    return out.index_add_(0, seg, src)
def _pad(x, pw):
    flat = tuple(v for pair in reversed(pw) for v in pair)
    return torch.nn.functional.pad(x, flat)

kernel_name = 'standalone__gqa_block_cached__near_ridge'

def setup_inputs():

    _w = (lambda a: (lambda t: t.to(torch.bfloat16) if t.is_floating_point() else t)(torch.as_tensor(a)))
    B, Sq, D = 16, 240, 512
    Hq, Hkv, Sk, Dh = 32, 32, 512, 128
    assert Hq % Hkv == 0, (Hq, Hkv)
    return {
        "x": _w((lambda *s: torch.randn(*s, dtype=torch.bfloat16) * 0.8)(B, Sq, D)),
        "k_cache": _w((lambda *s: torch.randn(*s, dtype=torch.bfloat16) * 0.8)(B, Hkv, Sk, Dh)),
        "v_cache": _w((lambda *s: torch.randn(*s, dtype=torch.bfloat16) * 0.05)(B, Hkv, Sk, Dh)),
        "wq": _w((lambda *s: torch.randn(*s, dtype=torch.bfloat16) * 0.8)(D, Hq * Dh) * (D ** -0.5)),
        "wo": _w((lambda *s: torch.randn(*s, dtype=torch.bfloat16) * 0.05)(Hq * Dh, D) * ((Hq * Dh) ** -0.5)),
    }

def reference(x, k_cache, v_cache, wq, wo):
    B, Sq, D = x.shape
    Hq, Dh = 32, 128
    Hkv = k_cache.shape[1]
    rep = Hq // Hkv
    q = (lambda x, *d: x.permute(*d))((x @ wq).reshape(B, Sq, Hq, Dh), 0, 2, 1, 3)
    k = (lambda x, n, axis: torch.repeat_interleave(x, n, dim=axis))(k_cache, rep, axis=1)
    v = (lambda x, n, axis: torch.repeat_interleave(x, n, dim=axis))(v_cache, rep, axis=1)
    scores = torch.einsum("bhqd,bhkd->bhqk", q, k) * (Dh ** -0.5)
    p = _softmax(scores, axis=-1)
    o = torch.einsum("bhqk,bhkd->bhqd", p, v)
    return (lambda x, *d: x.permute(*d))(o, 0, 2, 1, 3).reshape(B, Sq, Hq * Dh) @ wo
```

```python
import sys, math
sys.path.insert(0, 'dev')
from sched import *

C_SCALE = (128 ** -0.5) * math.log2(math.e)
import struct
def f2u(f): return struct.unpack('<I', struct.pack('<f', f))[0]

Q   = V(0, 64)
SB_ = [V(64, 32), V(96, 32)]
PB_ = [V(128, 16), V(144, 16)]
NM  = V(160, 32)
QACC = V(64, 128)
NFR = 6
FR  = V(192, 4 * NFR)
KA  = V(216, 8)
VA  = [V(224, 4), V(228, 4)]
vKd = [V(232), V(233)]
vVd = V(234); vWd = V(235); vX = V(236); vO = V(237)
L   = [V(238), V(239)]
T   = V(240, 16)
OACC = A(0, 128)
XB  = A(128, 128)

sK = S(8, 4); sV = S(12, 4); sW = S(16, 4); sX = S(20, 4); sO = S(24, 4)
sWB = S(28); sC = S(29); sTHR = S(30); s32K = S(31)
sT = [S(32), S(33), S(34), S(35)]
sRET = S(40, 2)
sOH = S(36)

def qfrag(qt, s): return Q.sub(qt * 32 + s * 4, 4)
def stile(p, qt): return SB_[p].sub(qt * 16, 16)
def pfrag(p, qt, ks): return PB_[p].sub(qt * 8 + ks * 4, 4)
def nmt(qt): return NM.sub(qt * 16, 16)
def qacc(t, qt): return QACC.sub((2 * t + qt) * 16, 16)
def oacc(t, qt): return OACC.sub((2 * t + qt) * 16, 16)
def xfrag(i, qt, s): return XB.sub((i % 4) * 32 + qt * 16 + s * 4, 4)

class Gen:
    def __init__(self, nheads=2):
        self.p = Prog()
        self.fr = 0
        self.nheads = nheads
        self.tmpi = 0
        self.stubs = []
        self.ring = [[], []]
        for hd in range(nheads):
            base = 24 * hd
            for i in range(8):
                self.ring[0].append(('W', hd, 2 * i, base + i))
                self.ring[1].append(('W', hd, 2 * i + 1, base + i))
            for n in range(16):
                self.ring[0].append(('K', hd, n, base + (8 if n <= 1 else 7 + n)))
                self.ring[1].append(('V', hd, n, base + (9 + n if n <= 13 else 23)))
        self.nsteps = 24 * nheads
    def unit_pos(self, typ, hd, n):
        r = 0 if typ == 'K' else 1 if typ == 'V' else (n & 1)
        for k, u in enumerate(self.ring[r]):
            if u[0] == typ and u[1] == hd and u[2] == n: return r, k
        raise KeyError
    def next_frag(self):
        f = FR.sub(4 * (self.fr % NFR), 4); self.fr += 1; return f
    def dma(self, r, k, pin=None):
        if k >= len(self.ring[r]): return
        p = self.p
        typ, hd, n, ns = self.ring[r][k]
        slot = k % 8
        lds = r * 65536 + slot * 8192
        tok = 'D%d_%d' % (r, k)
        rel = 'REL%d_%d' % (r, k - 8)
        st = sT[2 * r]; st2 = sT[2 * r + 1]
        ii = []
        ii.append(p.salu('s_add_u32', 'm0', sWB, lds, extra_rd=[rel]))
        if typ == 'W':
            so = (32 * n) * 8192 + hd * 256
            ii.append(p.salu('s_mov_b32', st, so, scc=False))
            ii.append(p.salu('s_mov_b32', st2, so + 65536 - 1024, scc=False))
            ii.append(p.vmem("buffer_load_dwordx4 %s, %s, %s offen lds" % (vWd, sW, st),
                   regs_of(vWd) + regs_of(sW) + regs_of(st) + ['m0', rel], [tok + 'a']))
            ii.append(p.vmem("buffer_load_dwordx4 %s, %s, %s offen offset:1024 lds" % (vWd, sW, st2),
                   regs_of(vWd) + regs_of(sW) + regs_of(st2) + ['m0', rel], [tok + 'b']))
        else:
            so = (hd * 512 + 32 * n) * 256
            srd = sK if typ == 'K' else sV
            v0 = vKd[0] if typ == 'K' else vVd
            v1 = vKd[1] if typ == 'K' else vVd
            ii.append(p.salu('s_mov_b32', st, so, scc=False))
            ii.append(p.vmem("buffer_load_dwordx4 %s, %s, %s offen nt lds" % (v0, srd, st),
                   regs_of(v0) + regs_of(srd) + regs_of(st) + ['m0', rel], [tok + 'a']))
            ii.append(p.vmem("buffer_load_dwordx4 %s, %s, %s offen offset:1024 nt lds" % (v1, srd, st),
                   regs_of(v1) + regs_of(srd) + regs_of(st) + ['m0', rel], [tok + 'b']))
        if pin is not None:
            ii[-2].pin = pin; ii[-1].pin = pin + 4
    def xload(self, gi, pin=None):
        if gi >= 8 * self.nheads: return
        i = gi % 8
        for qt in range(2):
            for s in range(4):
                d = xfrag(gi, qt, s)
                so = '0' if qt == 0 else str(s32K)
                ins = self.p.vmem("buffer_load_dwordx4 %s, %s, %s, %s offen offset:%d" % (d, vX, sX, so, 128 * i + 32 * s),
                            regs_of(vX) + regs_of(sX) + ([] if qt == 0 else regs_of(s32K)), regs_of(d))
                if pin is not None: ins.pin = pin + 3 * (qt * 4 + s)
    def pub_tok(self, r, k):
        return 'PUB%d_%d' % (r, k)
    def end_step(self, j):
        rd = []; wr = []
        for r in range(2):
            for k, u in enumerate(self.ring[r]):
                ns = u[3]
                if ns == j + 2 or (j == -1 and ns <= 1):
                    rd += ['D%d_%da' % (r, k), 'D%d_%db' % (r, k)]
                    wr.append(self.pub_tok(r, k))
                if ns == j:
                    wr.append('REL%d_%d' % (r, k))
        self.p.barrier(rd, wr)
        npin = 2
        for r in range(2):
            for k, u in enumerate(self.ring[r]):
                if u[3] == j:
                    self.dma(r, k + 8, pin=npin); npin += 10
    def read_k(self, hd, n, s):
        r, k = self.unit_pos('K', hd, n)
        f = self.next_frag()
        self.p.ds_read('ds_read_b128', f, KA[s], (k % 8) * 8192, extra_rd=[self.pub_tok(r, k)], bonus=14)
        return f
    def read_v(self, typ, hd, n, t, ks):
        r, k = self.unit_pos(typ, hd, n)
        f = self.next_frag()
        for jj in range(2):
            self.p.ds_read('ds_read_b64_tr_b16', f.sub(2 * jj, 2), VA[r][t], (k % 8) * 8192 + 4096 * ks + 2048 * jj,
                           extra_rd=[self.pub_tok(r, k)], bonus=14)
        return f
    def wstep(self, hd, i):
        p = self.p
        gi = hd * 8 + i
        order = [(s, t) for s in range(4) for t in range(4)]
        if i == 7: order = [(s, t) for t in range(4) for s in range(4)]
        for (s, t) in order:
            f = self.read_v('W', hd, 2 * i + (s >> 1), t, s & 1)
            for qt in range(2):
                c = 0 if (i == 0 and s == 0) else qacc(t, qt)
                p.mfma(32, qacc(t, qt), f, xfrag(gi, qt, s), c)
            if i == 7 and s == 3:
                for qt in range(2): self.qconv(t, qt)
        self.xload(gi + 4, pin=4)
        self.end_step(24 * hd + i)
    def qconv(self, t, qt):
        p = self.p
        a = qacc(t, qt)
        for r in range(16):
            p.valu('v_mul_f32', a[r], sC, a[r])
        for r in range(0, 16, 2):
            d = qfrag(qt, 2 * t + (r >> 3))[(r & 7) >> 1]
            p.valu('v_cvt_pk_bf16_f32', d, a[r], a[r + 1])
    def qk(self, hd, n, cinit):
        p = self.p
        par = n & 1
        for s in range(8):
            f = self.read_k(hd, n, s)
            for qt in range(2):
                if s == 0: c = nmt(qt) if cinit else 0
                else: c = stile(par, qt)
                p.mfma(32, stile(par, qt), f, qfrag(qt, s), c)
    def pv(self, hd, n, tile_major=False, after_tile=None):
        p = self.p
        par = n & 1
        order = [(ks, t) for ks in range(2) for t in range(4)]
        if tile_major: order = [(ks, t) for t in range(4) for ks in range(2)]
        for (ks, t) in order:
            f = self.read_v('V', hd, n, t, ks)
            for qt in range(2):
                c = 0 if (n == 0 and ks == 0) else oacc(t, qt)
                p.mfma(32, oacc(t, qt), f, pfrag(par, qt, ks), c)
            if after_tile and ks == 1: after_tile(t)
    def etmp(self):
        r = T[2 + (self.tmpi % 8)]; self.tmpi += 1; return r
    def softmax(self, u):
        p = self.p
        par = u & 1
        for qt in range(2):
            s = stile(par, qt); lt = T[qt]
            for r in range(0, 16, 2):
                e0 = self.etmp(); e1 = self.etmp()
                p.valu('v_exp_f32', e0, s[r]); p.valu('v_exp_f32', e1, s[r + 1])
                if r == 0:
                    p.valu('v_add_f32', lt, e0, e1)
                else:
                    p.valu('v_add_f32', lt, e0, lt); p.valu('v_add_f32', lt, e1, lt)
                p.valu('v_cvt_pk_bf16_f32', pfrag(par, qt, r >> 3)[(r & 7) >> 1], e0, e1)
    def first_max(self):
        p = self.p
        for qt in range(2):
            s = stile(0, qt); m = T[10 + 2 * qt]; m2 = T[11 + 2 * qt]
            p.valu('v_max3_f32', m, s[0], s[1], s[2])
            for r in range(3, 15, 2): p.valu('v_max3_f32', m, m, s[r], s[r + 1])
            p.valu('v_max_f32', m, s[15], m)
            p.valu('v_mov_b32', m2, m)
            p.valu('v_permlane32_swap_b32', m, m2)
            p.valu('v_max_f32', m, m, m2)
            for r in range(16): p.valu('v_sub_f32', s[r], s[r], m)
            for r in range(16): p.valu('v_sub_f32', nmt(qt)[r], 0, m)
            p.valu('v_mov_b32', L[qt], 0)
    def check(self, hd, u):
        p = self.p
        par = u & 1
        chk = T[14]
        p.valu('v_add_f32', chk, T[0], T[1])
        p.add(Inst("v_cmp_nge_f32 vcc, %s, %s" % (sTHR, chk), 'valu', regs_of(sTHR) + regs_of(chk), ['vcc'], size=4))
        lab = "R%d_%d" % (hd, u)
        touch = SB_[0].regs() + SB_[1].regs() + PB_[par].regs() + NM.regs() + L[0].regs() + L[1].regs() + T.regs() + OACC.regs()
        p.raw("s_cbranch_vccnz L%s\nB%s:" % (lab, lab), 'branch', rd=['vcc'] + touch, wr=touch, size=4, backbone=True)
        self.stubs.append("L%s:\n s_call_b64 %s, RARE%d\n s_branch B%s\n" % (lab, sRET, par, lab))
        for qt in range(2): p.valu('v_add_f32', L[qt], T[qt], L[qt])
    def epi_start(self):
        p = self.p
        for qt in range(2):
            t2 = T[14 + qt]
            p.valu('v_mov_b32', t2, L[qt])
            p.valu('v_permlane32_swap_b32', L[qt], t2)
            p.valu('v_add_f32', L[qt], L[qt], t2)
            p.valu('v_rcp_f32', L[qt], L[qt])
    def epi_tile(self, hd, t):
        p = self.p
        for qt in range(2):
            for rho in range(2):
                g = T.sub(8 * (self.tmpi % 2), 8); self.tmpi += 1
                o = oacc(t, qt)
                for r in range(8): p.valu('v_accvgpr_read_b32', g[r], o[8 * rho + r])
                for r in range(8): p.valu('v_mul_f32', g[r], L[qt], g[r])
                for r in range(4): p.valu('v_cvt_pk_bf16_f32', g[r], g[2 * r], g[2 * r + 1])
                so = sT[0] if False else S(37 + qt)
                ins = p.vmem("buffer_store_dwordx4 %s, %s, %s, %s offen offset:%d" % (g.sub(0, 4), vO, sO, so, t * 1024 + rho * 512),
                       regs_of(g.sub(0, 4)) + regs_of(vO) + regs_of(sO) + regs_of(so), [], store=True)
                ins.pin = 6
    def head(self, hd):
        p = self.p
        for i in range(8): self.wstep(hd, i)
        base = 24 * hd
        self.qk(hd, 0, False); self.qk(hd, 1, False)
        self.first_max(); self.softmax(0)
        for qt in range(2): p.valu('v_add_f32', L[qt], T[qt], L[qt])
        self.end_step(base + 8)
        for u in range(1, 15):
            self.qk(hd, u + 1, True); self.pv(hd, u - 1)
            if u == 1:
                for qt in range(2):
                    for r in range(16): p.valu('v_add_f32', stile(1, qt)[r], nmt(qt)[r], stile(1, qt)[r])
            self.softmax(u); self.check(hd, u)
            self.end_step(base + 8 + u)
        self.pv(hd, 14)
        self.softmax(15); self.check(hd, 15)
        self.epi_start()
        p.salu('s_add_u32', S(37), sOH, hd * 4096)
        p.salu('s_add_u32', S(38), sOH, hd * 4096 + 262144)
        self.pv(hd, 15, tile_major=True, after_tile=lambda t: self.epi_tile(hd, t))
        self.end_step(base + 23)
    def prologue_loads(self):
        self.xload(0); self.dma(0, 0); self.dma(1, 0)
        self.xload(1); self.dma(0, 1); self.dma(1, 1)
        self.end_step(-1)
        self.xload(2, pin=0); self.dma(0, 2, pin=0); self.dma(1, 2, pin=0)
        self.xload(3, pin=0)
        for k in range(3, 8):
            self.dma(0, k, pin=0); self.dma(1, k, pin=0)
    def rare(self, par):
        p = Prog()
        p.raw("s_nop 15"); p.raw("s_nop 7")
        for qt in range(2):
            s = stile(par, qt); sn = stile(1 - par, qt); m = T[10]; m2 = T[11]; f = T[12]
            p.valu('v_max3_f32', m, s[0], s[1], s[2])
            for r in range(3, 15, 2): p.valu('v_max3_f32', m, m, s[r], s[r + 1])
            p.valu('v_max_f32', m, s[15], m)
            p.valu('v_mov_b32', m2, m)
            p.valu('v_permlane32_swap_b32', m, m2)
            p.valu('v_max3_f32', m, m, m2, 0)
            p.valu('v_sub_f32', f, 0, m)
            p.valu('v_exp_f32', f, f)
            for r in range(16):
                p.valu('v_sub_f32', s[r], s[r], m)
                p.valu('v_sub_f32', sn[r], sn[r], m)
                p.valu('v_sub_f32', nmt(qt)[r], nmt(qt)[r], m)
            p.valu('v_mul_f32', L[qt], f, L[qt])
            for t in range(4):
                o = oacc(t, qt)
                for r in range(0, 16, 4):
                    for k in range(4): p.valu('v_accvgpr_read_b32', T[2 + k], o[r + k])
                    for k in range(4): p.valu('v_mul_f32', T[2 + k], f, T[2 + k])
                    for k in range(4): p.valu('v_accvgpr_write_b32', o[r + k], T[2 + k])
            lt = T[qt]
            for r in range(0, 16, 2):
                e0 = T[2]; e1 = T[3]
                p.valu('v_exp_f32', e0, s[r]); p.valu('v_exp_f32', e1, s[r + 1])
                p.raw("s_nop 0")
                if r == 0: p.valu('v_add_f32', lt, e0, e1)
                else:
                    p.valu('v_add_f32', lt, e0, lt); p.valu('v_add_f32', lt, e1, lt)
                p.valu('v_cvt_pk_bf16_f32', pfrag(par, qt, r >> 3)[(r & 7) >> 1], e0, e1)
        p.raw("s_nop 3")
        seq = insert_nops(p.ins)
        return "RARE%d:\n" % par + text_of(seq) + " s_setpc_b64 %s\n" % sRET

PRE = """
attn_kernel:
 s_cmp_ge_u32 s2, 256
 s_cbranch_scc1 A_END
 s_load_dwordx4 s[44:47], s[0:1], 0
 s_load_dwordx4 s[48:51], s[0:1], 16
 s_load_dwordx2 s[52:53], s[0:1], 56
 s_and_b32 s5, s2, 7
 s_lshr_b32 s6, s2, 3
 s_lshr_b32 s3, s5, 2
 s_lshl_b32 s3, s3, 3
 s_lshr_b32 s7, s6, 2
 s_add_u32 s3, s3, s7
 s_and_b32 s4, s5, 3
 s_lshl_b32 s4, s4, 2
 s_and_b32 s7, s6, 3
 s_add_u32 s4, s4, s7
 v_and_b32 v240, 63, v0
 v_lshrrev_b32 v241, 6, v0
 s_nop 0
 v_readfirstlane_b32 s54, v241
 v_lshrrev_b32 v242, 5, v240
 v_and_b32 v243, 31, v240
 v_bfe_u32 v244, v240, 4, 1
 v_bfe_u32 v245, v240, 2, 2
 v_and_b32 v246, 3, v240
 v_and_b32 v247, 15, v240
 v_lshrrev_b32 v248, 4, v240
 s_lshl_b32 s28, s54, 11
 s_mov_b32 s29, %(c)#x
 s_mov_b32 s30, %(thr)#x
 s_mov_b32 s31, 32768
 s_lshl_b32 s36, s4, 13
 v_xor_b32 v249, v242, v247
 v_lshlrev_b32 v249, 4, v249
 v_lshl_add_u32 v216, v243, 8, v249
 v_xor_b32 v217, 32, v216
 v_xor_b32 v218, 64, v216
 v_xor_b32 v219, 96, v216
 v_xor_b32 v220, 128, v216
 v_xor_b32 v221, 160, v216
 v_xor_b32 v222, 192, v216
 v_xor_b32 v223, 224, v216
 v_lshl_add_u32 v249, v242, 2, v245
 v_lshlrev_b32 v249, 8, v249
 v_lshl_add_u32 v249, v245, 6, v249
 v_lshl_add_u32 v249, v244, 5, v249
 v_and_b32 v250, 1, v246
 v_lshl_add_u32 v249, v250, 4, v249
 v_lshrrev_b32 v250, 1, v246
 v_lshl_add_u32 v224, v250, 3, v249
 v_xor_b32 v225, 64, v224
 v_xor_b32 v226, 128, v224
 v_xor_b32 v227, 192, v224
 v_add_u32 v228, 0x10000, v224
 v_add_u32 v229, 0x10000, v225
 v_add_u32 v230, 0x10000, v226
 v_add_u32 v231, 0x10000, v227
 v_lshl_add_u32 v249, v241, 3, v248
 v_and_b32 v250, 15, v249
 v_xor_b32 v250, v250, v247
 v_lshlrev_b32 v250, 4, v250
 v_lshl_add_u32 v232, v249, 8, v250
 v_xor_b32 v233, 64, v232
 v_lshlrev_b32 v250, 2, v248
 v_xor_b32 v250, v250, v247
 v_lshlrev_b32 v250, 4, v250
 v_lshl_add_u32 v234, v249, 8, v250
 v_lshrrev_b32 v251, 1, v241
 v_lshlrev_b32 v251, 4, v251
 v_and_b32 v252, 1, v241
 v_lshl_add_u32 v251, v252, 2, v251
 v_add_u32 v251, v251, v248
 v_lshl_add_u32 v235, v251, 13, v250
 ; x: (64w + q31)*1024 + hf*16
 v_lshl_add_u32 v251, v241, 6, v243
 v_lshlrev_b32 v251, 10, v251
 v_lshl_add_u32 v236, v242, 4, v251
 ; O: (4w+g1)*131072 + hf*256 + l15*16
 v_lshl_add_u32 v251, v241, 2, v244
 v_lshlrev_b32 v251, 17, v251
 v_lshl_add_u32 v251, v242, 8, v251
 v_lshl_add_u32 v237, v247, 4, v251
 s_waitcnt lgkmcnt(0)
 s_lshl_b32 s5, s3, 4
 s_add_u32 s5, s5, s4
 s_lshl_b32 s5, s5, 18
 s_add_u32 s8, s46, s5
 s_addc_u32 s9, s47, 0
 s_mov_b32 s10, 262144
 s_mov_b32 s11, 0x20000
 s_add_u32 s12, s48, s5
 s_addc_u32 s13, s49, 0
 s_mov_b32 s14, 262144
 s_mov_b32 s15, 0x20000
 s_lshl_b32 s5, s4, 9
 s_add_u32 s16, s50, s5
 s_addc_u32 s17, s51, 0
 s_sub_u32 s18, 4194304, s5
 s_mov_b32 s19, 0x20000
 s_mul_i32 s5, s3, 245760
 s_add_u32 s20, s44, s5
 s_addc_u32 s21, s45, 0
 s_mov_b32 s22, 245760
 s_mov_b32 s23, 0x20000
 s_lshl_b32 s5, s3, 21
 s_add_u32 s24, s52, s5
 s_addc_u32 s25, s53, 0
 s_mov_b32 s26, 2097152
 s_mov_b32 s27, 0x20000
"""

def gen_attn():
    g = Gen(2)
    g.prologue_loads()
    for hd in range(2): g.head(hd)
    seq = schedule(g.p.ins, verbose=True)
    seq = insert_waits(seq)
    seq = insert_nops(seq)
    nmis, size = align8(seq, 0)
    print("attn body bytes", size, "misaligned", nmis, "insts", len(seq),
          "nops", sum(1 for i in seq if i.kind == 'nop'), "waits", sum(1 for i in seq if i.kind == 'wait'), file=sys.stderr)
    txt = PRE % dict(c=f2u(C_SCALE), thr=f2u(65536.0))
    txt += ".p2align 3\n"
    txt += text_of(seq)
    txt += "A_END:\n s_endpgm\n"
    txt += "".join(g.stubs)
    txt += g.rare(0) + g.rare(1)
    return txt

if __name__ == '__main__':
    t = gen_attn()
    open('attn_body.s', 'w').write(t)
```

```python
import sys, math
sys.path.insert(0, 'dev')
from sched import *

NB = 16
OB = V(0, 8 * NB)
NFR = 8
FR = V(128, 4 * NFR)
ACC = V(160, 32)
AA = [V(192, 4), V(196, 4)]
vB = [V(200), V(201)]
vW = [V(202), V(203)]
vOut = V(204)
T = V(208, 16)
sO = S(8, 4); sW = S(12, 4); sOut = S(16, 4)
sWB = S(28)
sT = [S(32), S(33), S(34), S(35)]
NST = 32
NSL = 8

class Gen2:
    def __init__(self):
        self.p = Prog(); self.fr = 0
    def dma(self, st, pin=None):
        if st >= NST: return
        p = self.p
        slot = st % NSL
        rel = 'REL%d' % (st - NSL)
        ii = []
        for hh in range(2):
            ii.append(p.salu('s_add_u32', 'm0', sWB, slot * 16384 + hh * 8192, extra_rd=[rel]))
            s = sT[hh]
            ii.append(p.salu('s_mov_b32', s, (st * 128 + hh * 64) * 1024, scc=False))
            for i in range(2):
                ins = p.vmem("buffer_load_dwordx4 %s, %s, %s offen%s lds" % (vW[i], sW, s, " offset:1024" if i else ""),
                             regs_of(vW[i]) + regs_of(sW) + regs_of(s) + ['m0', rel], ['D%d_%d' % (st, 2 * hh + i)])
                if pin is not None: ins.pin = pin + 8 * (2 * hh + i)
    def oload(self, k, pin=None):
        if k >= 128: return
        p = self.p
        s = sT[2 + ((k >> 2) & 1)]
        if k % 4 == 0:
            p.salu('s_mov_b32', s, k * 1024, scc=False)
        for qi in range(2):
            d = OB.sub((k % NB) * 8 + qi * 4, 4)
            ins = p.vmem("buffer_load_dwordx4 %s, %s, %s, %s offen offset:%d" % (d, vB[qi], sO, s, (k % 4) * 1024),
                   regs_of(vB[qi]) + regs_of(sO) + regs_of(s), regs_of(d))
            if pin is not None: ins.pin = pin + 2 * qi
    def end_stage(self, j):
        rd = []; wr = []
        for st in range(NST):
            if st == j + 2 or (j == -1 and st <= 1):
                rd += ['D%d_%d' % (st, i) for i in range(4)]; wr.append('PUB%d' % st)
        if j >= 0: wr.append('REL%d' % j)
        self.p.barrier(rd, wr)
        if j >= 0: self.dma(j + NSL, pin=2)
    def build(self):
        p = self.p
        for k in range(4): self.oload(k)
        self.dma(0)
        for k in range(4, 8): self.oload(k)
        self.dma(1)
        self.end_stage(-1)
        for k in range(8, 12): self.oload(k, pin=0)
        self.dma(2, pin=0)
        for k in range(12, NB): self.oload(k, pin=0)
        for st in range(3, NSL): self.dma(st, pin=0)
        for st in range(NST):
            slot = st % NSL
            for kl in range(4):
                k = st * 4 + kl
                for ct in range(4):
                    f = FR.sub(4 * (self.fr % NFR), 4); self.fr += 1
                    off = (slot % 4) * 16384 + kl * 4096
                    for jj in range(2):
                        p.ds_read('ds_read_b64_tr_b16', f.sub(2 * jj, 2), AA[slot // 4][ct], off + jj * 512,
                                  extra_rd=['PUB%d' % st], bonus=14)
                    for qi in range(2):
                        acc = ACC.sub((2 * ct + qi) * 4, 4)
                        p.mfma(16, acc, f, OB.sub((k % NB) * 8 + qi * 4, 4), 0 if k == 0 else acc)
                self.oload(k + NB, pin=1)
            self.end_stage(st)
        for ct in range(4):
            for qi in range(2):
                acc = ACC.sub((2 * ct + qi) * 4, 4)
                g = T.sub(2 * (2 * ct + qi), 2)
                p.valu('v_cvt_pk_bf16_f32', g[0], acc[0], acc[1])
                p.valu('v_cvt_pk_bf16_f32', g[1], acc[2], acc[3])
                so = '0' if qi == 0 else str(S(29))
                p.vmem("buffer_store_dwordx2 %s, %s, %s, %s offen offset:%d" % (g, vOut, sOut, so, ct * 32),
                       regs_of(g) + regs_of(vOut) + regs_of(sOut) + ([] if qi == 0 else regs_of(S(29))), [], store=True)

PRE2 = """
oproj_kernel:
 s_cmp_ge_u32 s2, 256
 s_cbranch_scc1 P_END
 s_load_dwordx4 s[44:47], s[0:1], 32
 s_load_dwordx2 s[52:53], s[0:1], 56
 s_and_b32 s5, s2, 7
 s_lshr_b32 s6, s2, 3
 s_and_b32 s4, s6, 7
 s_lshr_b32 s6, s6, 3
 s_lshl_b32 s5, s5, 2
 s_add_u32 s5, s5, s6
 s_lshr_b32 s3, s5, 1
 s_and_b32 s7, s5, 1
 v_and_b32 v208, 63, v0
 v_lshrrev_b32 v209, 6, v0
 s_nop 0
 v_readfirstlane_b32 s54, v209
 v_lshrrev_b32 v210, 4, v208
 v_bfe_u32 v211, v208, 2, 2
 v_and_b32 v212, 3, v208
 v_and_b32 v213, 15, v208
 s_lshl_b32 s28, s54, 11
 s_mov_b32 s29, 16384
 v_lshl_add_u32 v214, v210, 3, v211
 v_lshlrev_b32 v214, 7, v214
 v_lshrrev_b32 v215, 1, v211
 v_and_b32 v216, 1, v210
 v_lshl_add_u32 v215, v216, 1, v215
 v_lshl_add_u32 v214, v215, 5, v214
 v_lshrrev_b32 v215, 1, v212
 v_lshl_add_u32 v214, v215, 4, v214
 v_and_b32 v215, 1, v212
 v_lshl_add_u32 v192, v215, 3, v214
 v_xor_b32 v193, 32, v192
 v_xor_b32 v194, 64, v192
 v_xor_b32 v195, 96, v192
 v_add_u32 v196, 0x10000, v192
 v_add_u32 v197, 0x10000, v193
 v_add_u32 v198, 0x10000, v194
 v_add_u32 v199, 0x10000, v195
 s_lshl_b32 s5, s7, 3
 v_lshl_add_u32 v214, v209, 1, s5
 v_lshlrev_b32 v214, 17, v214
 v_lshl_add_u32 v200, v208, 4, v214
 v_add_u32 v201, 0x20000, v200
 v_lshrrev_b32 v214, 3, v208
 v_lshl_add_u32 v214, v209, 4, v214
 v_lshlrev_b32 v214, 10, v214
 v_and_b32 v215, 7, v208
 v_and_b32 v216, 1, v210
 v_lshlrev_b32 v216, 1, v216
 v_xor_b32 v215, v215, v216
 v_lshl_add_u32 v202, v215, 4, v214
 v_xor_b32 v203, 64, v202
 v_add_u32 v203, 7168, v203
 s_lshl_b32 s5, s7, 7
 v_lshl_add_u32 v214, v209, 5, s5
 v_add_u32 v214, v214, v213
 v_lshlrev_b32 v214, 10, v214
 v_lshl_add_u32 v204, v210, 3, v214
 s_waitcnt lgkmcnt(0)
 s_lshl_b32 s5, s3, 21
 s_add_u32 s8, s52, s5
 s_addc_u32 s9, s53, 0
 s_mov_b32 s10, 1966080
 s_mov_b32 s11, 0x20000
 s_lshl_b32 s5, s4, 7
 s_add_u32 s12, s44, s5
 s_addc_u32 s13, s45, 0
 s_sub_u32 s14, 4194304, s5
 s_mov_b32 s15, 0x20000
 s_mul_i32 s6, s3, 245760
 s_add_u32 s6, s6, s5
 s_add_u32 s16, s46, s6
 s_addc_u32 s17, s47, 0
 s_sub_u32 s18, 245760, s5
 s_mov_b32 s19, 0x20000
"""

def gen_oproj():
    g = Gen2(); g.build()
    seq = schedule(g.p.ins, verbose=True, mfma_res_lat=40)
    seq = insert_waits(seq)
    seq = insert_nops(seq)
    nmis, size = align8(seq, 0)
    print("oproj body bytes", size, "misaligned", nmis, "insts", len(seq),
          "nops", sum(1 for i in seq if i.kind == 'nop'), "waits", sum(1 for i in seq if i.kind == 'wait'), file=sys.stderr)
    return PRE2 + ".p2align 3\n" + text_of(seq) + "P_END:\n s_endpgm\n"

if __name__ == '__main__':
    open('oproj_body.s', 'w').write(gen_oproj())
```

```python
import re, sys

def R(kind, lo, n=1):
    return [(kind, lo + i) for i in range(n)]

def rtxt(kind, lo, n=1):
    if n == 1:
        return "%s%d" % (kind, lo)
    return "%s[%d:%d]" % (kind, lo, lo + n - 1)

class Reg:
    def __init__(self, kind, lo, n=1):
        self.kind, self.lo, self.n = kind, lo, n
    def __str__(self):
        return rtxt(self.kind, self.lo, self.n)
    def regs(self):
        return R(self.kind, self.lo, self.n)
    def sub(self, off, n=1):
        assert off + n <= self.n, (self, off, n)
        return Reg(self.kind, self.lo + off, n)
    def __getitem__(self, i):
        return self.sub(i, 1)

def V(lo, n=1): return Reg('v', lo, n)
def A(lo, n=1): return Reg('a', lo, n)
def S(lo, n=1): return Reg('s', lo, n)

def regs_of(x):
    if isinstance(x, Reg):
        return x.regs()
    if isinstance(x, str) and x in ('vcc', 'scc', 'm0', 'exec'):
        return [x]
    return []

class Inst:
    __slots__ = ('text', 'kind', 'rd', 'wr', 'size', 'cost', 'idx', 'preds', 'succs', 'backbone',
                 'deadline', 'passes', 'srcc', 'srcab', 'emitted', 't', 'bonus', 'e64able', 'tag', 'pin')
    def __init__(self, text, kind, rd=(), wr=(), size=8, cost=4, backbone=False, passes=0, srcc=(), srcab=(),
                 bonus=0, e64able=False, tag=None):
        self.text = text; self.kind = kind
        self.rd = list(rd); self.wr = list(wr)
        self.size = size; self.cost = cost; self.backbone = backbone
        self.passes = passes; self.srcc = list(srcc); self.srcab = list(srcab)
        self.preds = set(); self.succs = set()
        self.deadline = None; self.emitted = False; self.t = None
        self.bonus = bonus; self.e64able = e64able; self.tag = tag; self.pin = None

TRANS = ('v_exp_f32', 'v_rcp_f32', 'v_log_f32', 'v_rsq_f32', 'v_sqrt_f32')
VOP3_ONLY = ('v_cvt_pk_bf16_f32', 'v_max3_f32', 'v_fma_f32', 'v_add3_u32', 'v_lshl_add_u32', 'v_lshl_or_b32',
             'v_mul_lo_u32', 'v_and_or_b32', 'v_bfe_u32', 'v_mad_u32_u24', 'v_pk_mul_f32', 'v_pk_add_f32',
             'v_accvgpr_read_b32', 'v_accvgpr_write_b32', 'v_xad_u32', 'v_add_lshl_u32', 'v_perm_b32', 'v_or3_b32')

class Prog:
    def __init__(self):
        self.ins = []
    def add(self, i):
        self.ins.append(i); return i
    def valu(self, op, dst, *srcs, extra_rd=(), extra_wr=(), bonus=0, tag=None):
        rd = []
        for s in srcs: rd += regs_of(s)
        wr = regs_of(dst)
        txt = "%s %s, %s" % (op, dst, ", ".join(str(s) for s in srcs))
        lit = any((not isinstance(s, Reg)) and is_literal(s) for s in srcs)
        if op in VOP3_ONLY:
            size = 8; e64 = False
        else:
            size = 8 if lit else 4
            e64 = not lit
            if len(srcs) == 2 and not (isinstance(srcs[1], Reg) and srcs[1].kind == 'v'):
                size = 8; e64 = False
            if any(isinstance(s, str) and s.startswith('-v') for s in srcs):
                size = 8; e64 = False
        kind = 'trans' if op in TRANS else 'valu'
        if op.startswith('v_permlane'):
            kind = 'perm'; rd += regs_of(dst); wr += regs_of(srcs[0]); size = 4; e64 = False
        return self.add(Inst(txt, kind, rd + list(extra_rd), wr + list(extra_wr), size=size,
                             cost=8 if kind == 'trans' else 4, bonus=bonus, e64able=e64, tag=tag))
    def mfma(self, shape, d, a, b, c, extra_rd=(), extra_wr=(), tag=None):
        op = 'v_mfma_f32_32x32x16_bf16' if shape == 32 else 'v_mfma_f32_16x16x32_bf16'
        rd = regs_of(a) + regs_of(b) + regs_of(c)
        i = Inst("%s %s, %s, %s, %s" % (op, d, a, b, c), 'mfma', rd + list(extra_rd), regs_of(d) + list(extra_wr),
                 size=8, cost=8, backbone=True, passes=8 if shape == 32 else 4,
                 srcc=regs_of(c), srcab=regs_of(a) + regs_of(b), tag=tag)
        return self.add(i)
    def ds_read(self, op, dst, addr, offset, extra_rd=(), bonus=0):
        return self.add(Inst("%s %s, %s offset:%d" % (op, dst, addr, offset), 'lds', regs_of(addr) + list(extra_rd),
                             regs_of(dst), size=8, cost=4, bonus=bonus))
    def salu(self, op, dst, *srcs, scc=True, extra_rd=(), extra_wr=(), bonus=0):
        rd = []
        for s in srcs: rd += regs_of(s)
        wr = regs_of(dst) + (['scc'] if scc else [])
        lit = any((not isinstance(s, Reg)) and is_literal(s) for s in srcs)
        return self.add(Inst("%s %s, %s" % (op, dst, ", ".join(str(s) for s in srcs)), 'salu', rd + list(extra_rd),
                             wr + list(extra_wr), size=8 if lit else 4, cost=4, bonus=bonus))
    def vmem(self, text, rd, wr, cost=8, bonus=0, store=False):
        return self.add(Inst(text, 'vmem_st' if store else 'vmem', rd, wr, size=8, cost=cost, bonus=bonus))
    def barrier(self, rd=(), wr=()):
        return self.add(Inst("s_barrier", 'barrier', list(rd) + ['BAR'], list(wr) + ['BAR'], size=4, cost=4, backbone=True))
    def raw(self, text, kind='misc', rd=(), wr=(), size=4, cost=4, backbone=False):
        return self.add(Inst(text, kind, rd, wr, size=size, cost=cost, backbone=backbone))

def is_literal(s):
    if isinstance(s, Reg): return False
    if isinstance(s, (int,)):
        return not (-16 <= s <= 64)
    if isinstance(s, float):
        return s not in (0.5, -0.5, 1.0, -1.0, 2.0, -2.0, 4.0, -4.0, 0.0)
    s = str(s)
    if s in ('vcc', 'exec', 'm0', 'scc'): return False
    if re.match(r'^-?[vas]\d', s) or re.match(r'^-?[vas]\[', s): return False
    try:
        v = int(s, 0); return not (-16 <= v <= 64)
    except ValueError:
        pass
    try:
        return float(s) not in (0.5, -0.5, 1.0, -1.0, 2.0, -2.0, 4.0, -4.0, 0.0)
    except ValueError:
        return True

def build_deps(ins):
    lastw = {}; readers = {}
    prev_bb = None
    for n, i in enumerate(ins):
        i.idx = n
        for r in i.rd:
            if r in lastw: i.preds.add(lastw[r])
        for r in i.wr:
            if r in lastw: i.preds.add(lastw[r])
            for q in readers.get(r, ()): i.preds.add(q)
        for r in i.rd:
            readers.setdefault(r, []).append(i)
        for r in i.wr:
            lastw[r] = i; readers[r] = []
        if i.backbone:
            if prev_bb is not None: i.preds.add(prev_bb)
            prev_bb = i
        i.preds.discard(i)
    for i in ins:
        for p in i.preds: p.succs.add(i)

def schedule(ins, gap_budget=24, mfma_res_lat=64, lds_lat=140, verbose=False):
    build_deps(ins)
    bb = [i for i in ins if i.backbone]
    for k, b in enumerate(bb): b.deadline = k
    for i in reversed(ins):
        if i.backbone: continue
        d = 10 ** 9
        for s in i.succs:
            if s.deadline is not None: d = min(d, s.deadline)
        i.deadline = d
    out = []
    st = {'t': 0, 'free': 0}
    pend = [i for i in ins if not i.backbone]
    rel = {}
    for i in ins:
        if i.backbone:
            rel[i] = i.deadline
        else:
            rel[i] = max([rel[p] for p in i.preds], default=-1)
    for i in pend:
        if i.pin is not None:
            i.deadline = min(i.deadline, rel[i] + i.pin)
    for i in reversed(ins):
        if i.backbone: continue
        for s in i.succs:
            i.deadline = min(i.deadline, s.deadline)
    def key(i): return (i.deadline - i.bonus, i.idx)
    import heapq
    npred = {i: len(i.preds) for i in ins}
    ready = []
    for i in pend:
        if npred[i] == 0: ready.append(i)
    def lat_ok(i):
        for p in i.preds:
            if p.kind == 'mfma' and i.kind != 'mfma' and (set(p.wr) & (set(i.rd) | set(i.wr))):
                if st['t'] < p.t + mfma_res_lat: return False
            if p.kind == 'mfma' and i.kind in ('valu', 'trans', 'perm') and (set(p.srcc) & set(i.wr)):
                if st['t'] < p.t + 40: return False
            if p.kind == 'trans' and out and out[-1] is p and i.kind != 'trans': return False
        return True
    def emit(i):
        assert not i.emitted
        if i.kind == 'mfma':
            st['t'] = max(st['t'], st['free'])
            i.t = st['t']; st['free'] = st['t'] + 4 * i.passes; st['t'] += i.cost
        else:
            i.t = st['t']; st['t'] += i.cost
        i.emitted = True; out.append(i)
        if i in ready_set: ready_set.discard(i)
        for s in i.succs:
            npred[s] -= 1
            if npred[s] == 0 and not s.backbone: ready_set.add(s)
    ready_set = set(ready)
    def force(i):
        stack = [p for p in i.preds if not p.emitted]
        if stack:
            need = set()
            while stack:
                p = stack.pop()
                if p in need or p.emitted: continue
                need.add(p); stack += [q for q in p.preds if not q.emitted]
            for p in sorted(need, key=lambda x: x.idx):
                assert not p.backbone or p.emitted, "backbone order violation"
                emit(p)
        emit(i)
    for b in bb:
        while True:
            room = st['free'] - st['t']
            if b.kind != 'mfma': room = max(room, 0)
            cands = [i for i in ready_set if i.cost <= room and lat_ok(i)]
            if not cands:
                break
            c = min(cands, key=key)
            emit(c)
        force(b)
    rest = [i for i in ins if not i.emitted]
    for i in sorted(rest, key=lambda x: x.idx):
        if not i.emitted: force(i)
    if verbose: print("sched est cycles", st['t'], file=sys.stderr)
    return out

def insert_waits(seq, vm_init=(), lg_init=()):
    out = []
    vm = []
    lg = []
    for i in seq:
        touched = set(i.rd) | set(i.wr)
        nv = None; nl = None
        for k, p in enumerate(vm):
            if p.kind == 'vmem' and (set(p.wr) & touched): nv = len(vm) - 1 - k
            if p.kind == 'vmem_st' and ('STORES' in touched): nv = len(vm) - 1 - k
        for k, p in enumerate(lg):
            if set(p.wr) & touched: nl = len(lg) - 1 - k
        if nv is not None or nl is not None:
            parts = []
            if nv is not None:
                nv = min(nv, 63); parts.append("vmcnt(%d)" % nv); vm = vm[len(vm) - nv:] if nv else []
            if nl is not None:
                nl = min(nl, 15); parts.append("lgkmcnt(%d)" % nl); lg = lg[len(lg) - nl:] if nl else []
            out.append(Inst("s_waitcnt " + " ".join(parts), 'wait', size=4))
        out.append(i)
        if i.kind in ('vmem', 'vmem_st'): vm.append(i)
        if i.kind == 'lds':
            lg.append(i)
    return out

def states(i):
    if i.text.startswith('s_nop'):
        return int(i.text.split()[1]) + 1
    return 1

def insert_nops(seq):
    out = []
    VAL = ('valu', 'trans', 'perm')
    XDL_RD = {4: 8, 8: 12}
    XDL_OVL = {4: 6, 8: 10}
    XDL_WAR = {4: 3, 8: 7}
    def need_for(i):
        need = 0
        dist = 0
        for p in reversed(out[-40:]):
            req = 0
            pw = set(p.wr)
            if p.kind in VAL:
                if i.kind == 'mfma' and pw & set(i.rd): req = max(req, 2)
                if i.kind == 'perm' and pw & (set(i.rd)): req = max(req, 2)
                if p.kind == 'trans' and i.kind in ('valu', 'perm') and pw & set(i.rd): req = max(req, 1)
                if i.text.startswith('v_readfirstlane') or i.text.startswith('v_readlane'):
                    if pw & set(i.rd): req = max(req, 1)
                sw = {r for r in pw if r == 'vcc' or (isinstance(r, tuple) and r[0] == 's')}
                if sw & set(i.rd):
                    if i.kind in VAL: req = max(req, 2)
                    if i.kind in ('vmem', 'vmem_st'): req = max(req, 5)
            if p.kind == 'mfma':
                if i.kind == 'mfma':
                    if pw & set(i.srcab): req = max(req, XDL_RD[p.passes])
                    ov = pw & set(i.srcc)
                    if ov and not (set(i.srcc) == pw and i.passes == p.passes): req = max(req, XDL_OVL[p.passes])
                    if (pw & set(i.wr)) and not (set(i.srcc) == pw): req = max(req, XDL_OVL[p.passes])
                elif i.kind in VAL or i.kind in ('vmem', 'vmem_st', 'lds'):
                    if pw & (set(i.rd) | set(i.wr)): req = max(req, XDL_RD[p.passes])
                if i.kind in VAL and set(p.srcc) & set(i.wr): req = max(req, XDL_WAR[p.passes])
            if p.kind == 'vmem_st' and i.kind in VAL + ('lds', 'vmem') and (set(p.rd) & set(i.wr)):
                req = max(req, 2)
            if p.kind == 'salu' and 'm0' in pw and i.kind == 'vmem' and 'm0' in i.rd: req = max(req, 1)
            need = max(need, req - dist)
            dist += states(p)
        return need
    for i in seq:
        n = need_for(i)
        while n > 0:
            k = min(n, 16)
            out.append(Inst("s_nop %d" % (k - 1), 'nop', size=4)); n -= k
        out.append(i)
    return out

def align8(seq, start=0):
    pos = start
    run = []
    nmis = 0
    for i in seq:
        if i.size == 8:
            if pos % 8 == 4:
                c = [j for j in run if j.e64able]
                if c:
                    j = c[-1]
                    op, rest = j.text.split(' ', 1)
                    j.text = op + '_e64 ' + rest; j.size = 8; j.e64able = False
                    pos += 4
                else:
                    nmis += 1
            run = []
        else:
            run.append(i)
        pos += i.size
    return nmis, pos

def text_of(seq):
    return "".join(" " + i.text + "\n" for i in seq)
```

```python
import sys
sys.path.insert(0, 'dev')
import gen1, gen2
HDR = """; standalone__gqa_block_cached__near_ridge : generated by dev/build.py (own generator)
; @launch kernel=attn_kernel grid=(256,1,1) block=(256,1,1) lds=131072
; @launch kernel=oproj_kernel grid=(256,1,1) block=(256,1,1) lds=131072
.amdgcn_target "amdgcn-amd-amdhsa--gfx950"
.text
"""
def kd(name, vg, acc):
    return """.amdhsa_kernel %s
  .amdhsa_next_free_vgpr %d
  .amdhsa_next_free_sgpr 64
  .amdhsa_accum_offset %d
  .amdhsa_group_segment_fixed_size 0
  .amdhsa_kernarg_size 64
  .amdhsa_user_sgpr_count 2
  .amdhsa_user_sgpr_kernarg_segment_ptr 1
  .amdhsa_system_sgpr_workgroup_id_x 1
.end_amdhsa_kernel
""" % (name, vg, acc)
def build(path):
    t = HDR
    t += ".globl attn_kernel\n.p2align 8\n.type attn_kernel,@function" + gen1.gen_attn()
    t += ".globl oproj_kernel\n.p2align 8\n.type oproj_kernel,@function" + gen2.gen_oproj()
    t += '.section .rodata,"a"\n.p2align 6\n' + kd('attn_kernel', 512, 256) + '.p2align 6\n' + kd('oproj_kernel', 224, 224)
    open(path, 'w').write(t)
    print("bytes", len(t), file=sys.stderr)
if __name__ == '__main__':
    build(sys.argv[1] if len(sys.argv) > 1 else 'standalone__gqa_block_cached__near_ridge.s')
```

```python
import sys, math, os
sys.path.insert(0, 'dev')
from sched import *

C_SCALE = (128 ** -0.5) * math.log2(math.e)
import struct
def f2u(f): return struct.unpack('<I', struct.pack('<f', f))[0]

Q   = V(0, 64)
SB_ = [V(64, 32), V(96, 32)]
PB_ = [V(128, 16), V(144, 16)]
NM  = V(160, 32)
QACC = V(64, 128)
KA  = V(192, 8)
VA  = V(200, 4)
XC  = V(204, 4)
vKd = [V(208), V(209)]
vVd = V(210); vWd = V(211); vX = [V(212), V(213)]; vO = V(214)
L   = [V(216), V(217)]
T   = V(240, 16)
XA  = V(244, 4)
OACC = A(0, 128)
NXB = 4
XB  = A(128, 32 * NXB)
NFR = 5
FR  = V(220, 4 * NFR)

sK = S(8, 4); sV = S(12, 4); sW = S(16, 4); sX = S(20, 4); sO = S(24, 4)
sWB = S(28); sC = S(29); sTHR = S(30); sWB8 = S(31)
sT = [S(32), S(33), S(34), S(35)]
sRET = S(40, 2)
sOH = S(36)
sXT = [S(44), S(45), S(46), S(47)]
sXJ = S(60, 8)
sWJ = S(68, 8)
vST = V(215)

def qfrag(qt, s): return Q.sub(qt * 32 + s * 4, 4)
def stile(p, qt): return SB_[p].sub(qt * 16, 16)
def pfrag(p, qt, ks): return PB_[p].sub(qt * 8 + ks * 4, 4)
def nmt(qt): return NM.sub(qt * 16, 16)
def qacc(t, qt): return QACC.sub((2 * t + qt) * 16, 16)
def oacc(t, qt): return OACC.sub((2 * t + qt) * 16, 16)
def xfrag(i, qt, s): return XB.sub((i % NXB) * 32 + qt * 16 + s * 4, 4)

STAMP = False
KD0 = [int(x) for x in os.environ.get('KD0', '2,2,3,3,4,4,5,5').split(',')]
KVNT = os.environ.get('KVNT', ' nt')
class Gen:
    def __init__(self, nheads=2):
        self.p = Prog()
        self.fr = 0
        self.nheads = nheads
        self.tmpi = 0
        self.stubs = []
        self.xsi = 0
        self.ring = [[], []]
        for hd in range(nheads):
            base = 24 * hd
            for n in range(16):
                self.ring[1].append(('W', hd, n, base + (n >> 1)))
            for n in range(16):
                self.ring[0].append(('K', hd, n, base + (8 if n <= 1 else 7 + n)))
                self.ring[1].append(('V', hd, n, base + (9 + n if n <= 13 else 23)))
        self.xplan = {}
        st0 = 'ABCABCCC'
        d0 = [-2, -2, -2, -1, -1, -1, 1, 3]
        r0 = [-1, -1, -1, 0, 0, 1, 3, 5]
        for j in range(8): self.xplan[j] = (st0[j], d0[j], r0[j])
        for hd in range(1, nheads):
            b = 24 * hd
            st1 = 'CCCCCCCC'
            d1 = [b - 17, b - 14, b - 11, b - 8, b - 5, b + 0, b + 2, b + 4]
            r1 = [b - 14, b - 11, b - 8, b - 5, b + 0, b + 2, b + 4, b + 5.5]
            for j in range(8): self.xplan[8 * hd + j] = (st1[j], d1[j], r1[j])
        self.stage_last_read = {}
        self.k_gate = {}
    def unit_pos(self, typ, hd, n):
        r = 0 if typ == 'K' else 1
        for k, u in enumerate(self.ring[r]):
            if u[0] == typ and u[1] == hd and u[2] == n: return r, k
        raise KeyError
    def next_frag(self):
        f = FR.sub(4 * (self.fr % NFR), 4); self.fr += 1; return f
    def dma(self, r, k, pin=None, gate=()):
        if k >= len(self.ring[r]): return
        p = self.p
        typ, hd, n, ns = self.ring[r][k]
        slot = k % 8
        lds = r * 65536 + slot * 8192
        tok = 'D%d_%d' % (r, k)
        rel = ['REL%d_%d' % (r, k - 8)] + list(gate)
        st = sT[2 * r]; st2 = sT[2 * r + 1]
        ii = []
        ii.append(p.salu('s_add_u32', 'm0', sWB, lds, extra_rd=rel))
        if typ == 'W':
            so = (32 * (n & 1)) * 8192 + hd * 256
            ii.append(p.salu('s_add_u32', st, sWJ[n >> 1], so))
            ii.append(p.salu('s_add_u32', st2, sWJ[n >> 1], so + 65536 - 1024))
            ii.append(p.vmem("buffer_load_dwordx4 %s, %s, %s offen lds" % (vWd, sW, st),
                   regs_of(vWd) + regs_of(sW) + regs_of(st) + ['m0'] + rel, [tok + 'a']))
            ii.append(p.vmem("buffer_load_dwordx4 %s, %s, %s offen offset:1024 lds" % (vWd, sW, st2),
                   regs_of(vWd) + regs_of(sW) + regs_of(st2) + ['m0'] + rel, [tok + 'b']))
        else:
            so = (hd * 512 + 32 * n) * 256
            srd = sK if typ == 'K' else sV
            v0 = vKd[0] if typ == 'K' else vVd
            v1 = vKd[1] if typ == 'K' else vVd
            ii.append(p.salu('s_mov_b32', st, so, scc=False))
            ii.append(p.vmem("buffer_load_dwordx4 %s, %s, %s offen%s lds" % (v0, srd, st, KVNT),
                   regs_of(v0) + regs_of(srd) + regs_of(st) + ['m0'] + rel, [tok + 'a']))
            ii.append(p.vmem("buffer_load_dwordx4 %s, %s, %s offen offset:1024%s lds" % (v1, srd, st, KVNT),
                   regs_of(v1) + regs_of(srd) + regs_of(st) + ['m0'] + rel, [tok + 'b']))
    def xdma(self, gi, pin=None, after=()):
        p = self.p
        stage, ds, rs = self.xplan[gi]
        j = gi % 8
        base = {'A': 0, 'B': 32768, 'C': 131072}[stage]
        gate = list(after) + self.stage_last_read.get(stage, [])
        if stage in 'AB':
            lo = 0 if stage == 'A' else 4
            hd = gi // 8
            if hd > 0:
                for sl in range(lo, lo + 4):
                    gate.append('REL0_%d' % (16 * (hd - 1) + 8 + sl))
        for n in range(8):
            if n % 4 == 0:
                p.salu('s_add_u32', 'm0', sWB8, base + (n >> 2) * 4096, extra_rd=gate)
            st = sXT[self.xsi % 4]; self.xsi += 1
            p.salu('s_add_u32', st, sXJ[j], n * 8192 - (n & 3) * 1024)
            ins = p.vmem("buffer_load_dwordx4 %s, %s, %s offen offset:%d lds" % (vX[n & 1], sX, st, (n & 3) * 1024),
                         regs_of(vX[n & 1]) + regs_of(sX) + regs_of(st) + ['m0'] + gate, ['XD%d_%d' % (gi, n)])
    def xread(self, gi, pin=None, after=()):
        p = self.p
        stage, ds, rs = self.xplan[gi]
        toks = ['XD%d_%d' % (gi, n) for n in range(8)]
        regs = []
        for qt in range(2):
            for s in range(4):
                d = xfrag(gi, qt, s)
                a = XC[s] if stage == 'C' else XA[s]
                off = qt * 4096 + (32768 if stage == 'B' else 0)
                ins = p.ds_read('ds_read_b128', d, a, off, extra_rd=toks[4 * qt: 4 * qt + 4] + list(after))
                regs += d.regs()
        self.stage_last_read[stage] = regs
    def pub_step(self, u):
        typ, hd, n, ns = u
        if typ == 'W': second = (n & 1) == 1
        elif typ == 'K': second = (n == 1)
        else: second = (n != 14)
        return max(-1, ns - (1 if second else 2))
    def pub_tok(self, r, k):
        return 'PUB%d_%d' % (r, k)
    def kdma_step(self, k):
        hd = k // 16; n = k % 16
        if k >= 8: return self.ring[0][k - 8][3]
        return KD0[n]
    def end_step(self, j):
        rd = []; wr = []
        for r in range(2):
            for k, u in enumerate(self.ring[r]):
                ns = u[3]
                if self.pub_step(u) == j:
                    rd += ['D%d_%da' % (r, k), 'D%d_%db' % (r, k)]
                    wr.append(self.pub_tok(r, k))
                if ns == j:
                    wr.append('REL%d_%d' % (r, k))
        kd = [k for k in range(len(self.ring[0])) if self.kdma_step(k) == j]
        for k in kd:
            if k < 8:
                stage = 'A' if k < 4 else 'B'
                rd += self.stage_last_read.get(stage, [])
                wr.append('XREL%d' % k)
        self.p.barrier(rd, wr)
        if STAMP and j + 1 < 48 and (not os.environ.get('LIGHT') or j in (-1, 7, 8, 23, 31, 32)):
            self.p.raw("s_memtime s[42:43]\n s_waitcnt lgkmcnt(0)\n v_writelane_b32 v215, s42, %d" % (j + 1), 'stamp', rd=['BAR'], wr=['BAR'], size=16, backbone=True)
        bar = ['AFT%d' % j]
        self.p.ins[-1].wr.append(bar[0])
        npin = 2
        for gi, (stage, ds, rs) in sorted(self.xplan.items()):
            if rs == j: self.xread(gi, pin=npin, after=bar); npin += 4
        for k, u in enumerate(self.ring[1]):
            if u[3] == j:
                self.dma(1, k + 8)
        for gi, (stage, ds, rs) in sorted(self.xplan.items()):
            if ds == j: self.xdma(gi, after=bar)
        for k in kd:
            self.dma(0, k, gate=(['XREL%d' % k] if k < 8 else []))
    def read_k(self, hd, n, s):
        r, k = self.unit_pos('K', hd, n)
        f = self.next_frag()
        self.p.ds_read('ds_read_b128', f, KA[s], (k % 8) * 8192, extra_rd=[self.pub_tok(r, k)], bonus=14)
        return f
    def read_v(self, typ, hd, n, t, ks):
        r, k = self.unit_pos(typ, hd, n)
        f = self.next_frag()
        for jj in range(2):
            self.p.ds_read('ds_read_b64_tr_b16', f.sub(2 * jj, 2), VA[t], (k % 8) * 8192 + 4096 * ks + 2048 * jj,
                           extra_rd=[self.pub_tok(r, k)], bonus=14)
        return f
    def wstep(self, hd, i):
        p = self.p
        gi = hd * 8 + i
        order = [(s, t) for s in range(4) for t in range(4)]
        if i == 7: order = [(s, t) for t in range(4) for s in range(4)]
        cnt = 0
        for (s, t) in order:
            f = self.read_v('W', hd, 2 * i + (s >> 1), t, s & 1)
            for qt in range(2):
                c = 0 if (i == 0 and s == 0) else qacc(t, qt)
                mm = p.mfma(32, qacc(t, qt), f, xfrag(gi, qt, s), c)
            cnt += 1
            if cnt == 8:
                for g2, (stage, ds, rs) in sorted(self.xplan.items()):
                    if rs == 24 * hd + i - 0.5:
                        mm.wr.append('MID%d' % g2); self.xread(g2, after=['MID%d' % g2])
            if i == 7 and s == 3:
                for qt in range(2): self.qconv(t, qt)
        self.end_step(24 * hd + i)
    def qconv(self, t, qt):
        p = self.p
        a = qacc(t, qt)
        for r in range(16):
            p.valu('v_mul_f32', a[r], sC, a[r])
        for r in range(0, 16, 2):
            d = qfrag(qt, 2 * t + (r >> 3))[(r & 7) >> 1]
            p.valu('v_cvt_pk_bf16_f32', d, a[r], a[r + 1])
    def qk(self, hd, n, cinit):
        p = self.p
        par = n & 1
        for s in range(8):
            f = self.read_k(hd, n, s)
            for qt in range(2):
                if s == 0: c = nmt(qt) if cinit else 0
                else: c = stile(par, qt)
                p.mfma(32, stile(par, qt), f, qfrag(qt, s), c)
    def pv(self, hd, n, tile_major=False, after_tile=None):
        p = self.p
        par = n & 1
        order = [(ks, t) for ks in range(2) for t in range(4)]
        if tile_major: order = [(ks, t) for t in range(4) for ks in range(2)]
        for (ks, t) in order:
            f = self.read_v('V', hd, n, t, ks)
            for qt in range(2):
                c = 0 if (n == 0 and ks == 0) else oacc(t, qt)
                p.mfma(32, oacc(t, qt), f, pfrag(par, qt, ks), c)
            if after_tile and ks == 1: after_tile(t)
    def etmp(self):
        r = T[2 + (self.tmpi % 8)]; self.tmpi += 1; return r
    def softmax(self, u):
        p = self.p
        par = u & 1
        for qt in range(2):
            s = stile(par, qt); lt = T[qt]
            for r in range(0, 16, 2):
                e0 = self.etmp(); e1 = self.etmp()
                p.valu('v_exp_f32', e0, s[r]); p.valu('v_exp_f32', e1, s[r + 1])
                if r == 0:
                    p.valu('v_add_f32', lt, e0, e1)
                else:
                    p.valu('v_add_f32', lt, e0, lt); p.valu('v_add_f32', lt, e1, lt)
                p.valu('v_cvt_pk_bf16_f32', pfrag(par, qt, r >> 3)[(r & 7) >> 1], e0, e1)
    def first_max(self):
        p = self.p
        for qt in range(2):
            s = stile(0, qt); m = T[10 + 2 * qt]; m2 = T[11 + 2 * qt]
            p.valu('v_max3_f32', m, s[0], s[1], s[2])
            for r in range(3, 15, 2): p.valu('v_max3_f32', m, m, s[r], s[r + 1])
            p.valu('v_max_f32', m, s[15], m)
            p.valu('v_mov_b32', m2, m)
            p.valu('v_permlane32_swap_b32', m, m2)
            p.valu('v_max_f32', m, m, m2)
            for r in range(16): p.valu('v_sub_f32', s[r], s[r], m)
            for r in range(16): p.valu('v_sub_f32', nmt(qt)[r], 0, m)
            p.valu('v_mov_b32', L[qt], 0)
    def check(self, hd, u):
        p = self.p
        par = u & 1
        chk = T[14]
        p.valu('v_add_f32', chk, T[0], T[1])
        p.add(Inst("v_cmp_nge_f32 vcc, %s, %s" % (sTHR, chk), 'valu', regs_of(sTHR) + regs_of(chk), ['vcc'], size=4))
        lab = "R%d_%d" % (hd, u)
        touch = SB_[0].regs() + SB_[1].regs() + PB_[par].regs() + NM.regs() + L[0].regs() + L[1].regs() + T.sub(0, 16).regs() + OACC.regs()
        p.raw("s_cbranch_vccnz L%s\nB%s:" % (lab, lab), 'branch', rd=['vcc'] + touch, wr=touch, size=4, backbone=True)
        self.stubs.append("L%s:\n s_call_b64 %s, RARE%d\n s_branch B%s\n" % (lab, sRET, par, lab))
        for qt in range(2): p.valu('v_add_f32', L[qt], T[qt], L[qt])
    def epi_start(self):
        p = self.p
        for qt in range(2):
            t2 = T[14 + qt]
            p.valu('v_mov_b32', t2, L[qt])
            p.valu('v_permlane32_swap_b32', L[qt], t2)
            p.valu('v_add_f32', L[qt], L[qt], t2)
            p.valu('v_rcp_f32', L[qt], L[qt])
    def epi_tile(self, hd, t):
        p = self.p
        for qt in range(2):
            for rho in range(2):
                g = T.sub(8 * (self.tmpi % 2), 8); self.tmpi += 1
                o = oacc(t, qt)
                for r in range(8): p.valu('v_accvgpr_read_b32', g[r], o[8 * rho + r])
                for r in range(8): p.valu('v_mul_f32', g[r], L[qt], g[r])
                for r in range(4): p.valu('v_cvt_pk_bf16_f32', g[r], g[2 * r], g[2 * r + 1])
                so = S(37 + qt)
                ins = p.vmem("buffer_store_dwordx4 %s, %s, %s, %s offen offset:%d" % (g.sub(0, 4), vO, sO, so, t * 1024 + rho * 512),
                       regs_of(g.sub(0, 4)) + regs_of(vO) + regs_of(sO) + regs_of(so), [], store=True)
    def head(self, hd):
        p = self.p
        for i in range(8): self.wstep(hd, i)
        base = 24 * hd
        self.qk(hd, 0, False); self.qk(hd, 1, False)
        self.first_max(); self.softmax(0)
        for qt in range(2): p.valu('v_add_f32', L[qt], T[qt], L[qt])
        self.end_step(base + 8)
        for u in range(1, 15):
            self.qk(hd, u + 1, True); self.pv(hd, u - 1)
            if u == 1:
                for qt in range(2):
                    for r in range(16): p.valu('v_add_f32', stile(1, qt)[r], nmt(qt)[r], stile(1, qt)[r])
            self.softmax(u); self.check(hd, u)
            self.end_step(base + 8 + u)
        self.pv(hd, 14)
        self.softmax(15); self.check(hd, 15)
        self.epi_start()
        p.salu('s_add_u32', S(37), sOH, hd * 4096)
        p.salu('s_add_u32', S(38), sOH, hd * 4096 + 262144)
        self.pv(hd, 15, tile_major=True, after_tile=lambda t: self.epi_tile(hd, t))
        self.end_step(base + 23)
    def prologue_loads(self):
        self.dma(1, 0); self.xdma(0); self.dma(1, 1); self.dma(1, 2)
        self.xdma(1); self.dma(1, 3); self.dma(1, 4)
        self.xdma(2)
        for k in range(5, 8): self.dma(1, k)
        self.end_step(-1)
    def rare(self, par):
        p = Prog()
        p.raw("s_nop 15"); p.raw("s_nop 7")
        for qt in range(2):
            s = stile(par, qt); sn = stile(1 - par, qt); m = T[10]; m2 = T[11]; f = T[12]
            p.valu('v_max3_f32', m, s[0], s[1], s[2])
            for r in range(3, 15, 2): p.valu('v_max3_f32', m, m, s[r], s[r + 1])
            p.valu('v_max_f32', m, s[15], m)
            p.valu('v_mov_b32', m2, m)
            p.valu('v_permlane32_swap_b32', m, m2)
            p.valu('v_max3_f32', m, m, m2, 0)
            p.valu('v_sub_f32', f, 0, m)
            p.valu('v_exp_f32', f, f)
            for r in range(16):
                p.valu('v_sub_f32', s[r], s[r], m)
                p.valu('v_sub_f32', sn[r], sn[r], m)
                p.valu('v_sub_f32', nmt(qt)[r], nmt(qt)[r], m)
            p.valu('v_mul_f32', L[qt], f, L[qt])
            for t in range(4):
                o = oacc(t, qt)
                for r in range(0, 16, 4):
                    for k in range(4): p.valu('v_accvgpr_read_b32', T[2 + k], o[r + k])
                    for k in range(4): p.valu('v_mul_f32', T[2 + k], f, T[2 + k])
                    for k in range(4): p.valu('v_accvgpr_write_b32', o[r + k], T[2 + k])
            lt = T[qt]
            for r in range(0, 16, 2):
                e0 = T[2]; e1 = T[3]
                p.valu('v_exp_f32', e0, s[r]); p.valu('v_exp_f32', e1, s[r + 1])
                p.raw("s_nop 0")
                if r == 0: p.valu('v_add_f32', lt, e0, e1)
                else:
                    p.valu('v_add_f32', lt, e0, lt); p.valu('v_add_f32', lt, e1, lt)
                p.valu('v_cvt_pk_bf16_f32', pfrag(par, qt, r >> 3)[(r & 7) >> 1], e0, e1)
        p.raw("s_nop 3")
        seq = insert_nops(p.ins)
        return "RARE%d:\n" % par + text_of(seq) + " s_setpc_b64 %s\n" % sRET

PRE = """
attn_kernel:
 s_cmp_ge_u32 s2, 256
 s_cbranch_scc1 A_END
 s_load_dwordx4 s[56:59], s[0:1], 0
 s_load_dwordx4 s[48:51], s[0:1], 16
 s_load_dwordx2 s[52:53], s[0:1], 56
 s_and_b32 s5, s2, 7
 s_lshr_b32 s6, s2, 3
 s_lshr_b32 s3, s5, 2
 s_lshl_b32 s3, s3, 3
 s_lshr_b32 s7, s6, 2
 s_add_u32 s3, s3, s7
 s_and_b32 s4, s5, 3
 s_lshl_b32 s4, s4, 2
 s_and_b32 s7, s6, 3
 s_add_u32 s4, s4, s7
 v_and_b32 v224, 63, v0
 v_lshrrev_b32 v225, 6, v0
 s_nop 0
 v_readfirstlane_b32 s54, v225
 v_lshrrev_b32 v226, 5, v224
 v_and_b32 v227, 31, v224
 v_bfe_u32 v228, v224, 4, 1
 v_bfe_u32 v229, v224, 2, 2
 v_and_b32 v230, 3, v224
 v_and_b32 v231, 15, v224
 v_lshrrev_b32 v232, 4, v224
 s_lshl_b32 s28, s54, 11
 s_lshl_b32 s31, s54, 13
 s_mov_b32 s29, %(c)#x
 s_mov_b32 s30, %(thr)#x
 s_lshl_b32 s36, s4, 13
 v_xor_b32 v233, v226, v231
 v_lshlrev_b32 v233, 4, v233
 v_lshl_add_u32 v192, v227, 8, v233
 v_xor_b32 v193, 32, v192
 v_xor_b32 v194, 64, v192
 v_xor_b32 v195, 96, v192
 v_xor_b32 v196, 128, v192
 v_xor_b32 v197, 160, v192
 v_xor_b32 v198, 192, v192
 v_xor_b32 v199, 224, v192
 v_lshl_add_u32 v233, v226, 2, v229
 v_lshlrev_b32 v233, 8, v233
 v_lshl_add_u32 v233, v229, 6, v233
 v_lshl_add_u32 v233, v228, 5, v233
 v_and_b32 v234, 1, v230
 v_lshl_add_u32 v233, v234, 4, v233
 v_lshrrev_b32 v234, 1, v230
 v_lshl_add_u32 v233, v234, 3, v233
 v_add_u32 v200, 0x10000, v233
 v_xor_b32 v201, 64, v200
 v_xor_b32 v202, 128, v200
 v_xor_b32 v203, 192, v200
 v_bfe_u32 v233, v227, 1, 3
 v_xor_b32 v233, v233, v226
 v_lshlrev_b32 v233, 4, v233
 v_lshl_add_u32 v233, v227, 7, v233
 v_lshl_add_u32 v244, v225, 13, v233
 v_xor_b32 v245, 32, v244
 v_xor_b32 v246, 64, v244
 v_xor_b32 v247, 96, v244
 v_add_u32 v204, 0x20000, v244
 v_add_u32 v205, 0x20000, v245
 v_add_u32 v206, 0x20000, v246
 v_add_u32 v207, 0x20000, v247
 v_lshl_add_u32 v233, v225, 3, v232
 v_and_b32 v234, 15, v233
 v_xor_b32 v234, v234, v231
 v_lshlrev_b32 v234, 4, v234
 v_lshl_add_u32 v208, v233, 8, v234
 v_xor_b32 v209, 64, v208
 v_lshlrev_b32 v234, 2, v232
 v_xor_b32 v234, v234, v231
 v_lshlrev_b32 v234, 4, v234
 v_lshl_add_u32 v210, v233, 8, v234
 v_lshrrev_b32 v235, 1, v225
 v_lshlrev_b32 v235, 4, v235
 v_and_b32 v236, 1, v225
 v_lshl_add_u32 v235, v236, 2, v235
 v_add_u32 v235, v235, v232
 v_lshl_add_u32 v211, v235, 13, v234
 v_lshrrev_b32 v235, 3, v224
 v_lshl_add_u32 v235, v225, 6, v235
 v_lshlrev_b32 v235, 10, v235
 v_and_b32 v236, 7, v224
 v_xor_b32 v236, v236, v232
 v_lshl_add_u32 v212, v236, 4, v235
 v_xor_b32 v213, 64, v212
 ; O: (4w+g1)*131072 + hf*256 + l15*16
 v_lshl_add_u32 v235, v225, 2, v228
 v_lshlrev_b32 v235, 17, v235
 v_lshl_add_u32 v235, v226, 8, v235
 v_lshl_add_u32 v214, v231, 4, v235
 s_lshr_b32 s6, s2, 3
 s_add_u32 s7, s6, 0
 s_and_b32 s7, s7, 7
 s_lshl_b32 s60, s7, 7
 s_lshl_b32 s68, s7, 19
 s_add_u32 s7, s6, 1
 s_and_b32 s7, s7, 7
 s_lshl_b32 s61, s7, 7
 s_lshl_b32 s69, s7, 19
 s_add_u32 s7, s6, 2
 s_and_b32 s7, s7, 7
 s_lshl_b32 s62, s7, 7
 s_lshl_b32 s70, s7, 19
 s_add_u32 s7, s6, 3
 s_and_b32 s7, s7, 7
 s_lshl_b32 s63, s7, 7
 s_lshl_b32 s71, s7, 19
 s_add_u32 s7, s6, 4
 s_and_b32 s7, s7, 7
 s_lshl_b32 s64, s7, 7
 s_lshl_b32 s72, s7, 19
 s_add_u32 s7, s6, 5
 s_and_b32 s7, s7, 7
 s_lshl_b32 s65, s7, 7
 s_lshl_b32 s73, s7, 19
 s_add_u32 s7, s6, 6
 s_and_b32 s7, s7, 7
 s_lshl_b32 s66, s7, 7
 s_lshl_b32 s74, s7, 19
 s_add_u32 s7, s6, 7
 s_and_b32 s7, s7, 7
 s_lshl_b32 s67, s7, 7
 s_lshl_b32 s75, s7, 19
 s_waitcnt lgkmcnt(0)
 s_lshl_b32 s5, s3, 4
 s_add_u32 s5, s5, s4
 s_lshl_b32 s5, s5, 18
 s_add_u32 s8, s58, s5
 s_addc_u32 s9, s59, 0
 s_mov_b32 s10, 262144
 s_mov_b32 s11, 0x20000
 s_add_u32 s12, s48, s5
 s_addc_u32 s13, s49, 0
 s_mov_b32 s14, 262144
 s_mov_b32 s15, 0x20000
 s_lshl_b32 s5, s4, 9
 s_add_u32 s16, s50, s5
 s_addc_u32 s17, s51, 0
 s_sub_u32 s18, 4194304, s5
 s_mov_b32 s19, 0x20000
 s_mul_i32 s5, s3, 245760
 s_add_u32 s20, s56, s5
 s_addc_u32 s21, s57, 0
 s_mov_b32 s22, 245760
 s_mov_b32 s23, 0x20000
 s_lshl_b32 s5, s3, 21
 s_add_u32 s24, s52, s5
 s_addc_u32 s25, s53, 0
 s_mov_b32 s26, 1966080
 s_mov_b32 s27, 0x20000
"""

def gen_attn():
    g = Gen(2)
    g.prologue_loads()
    for hd in range(2): g.head(hd)
    seq = schedule(g.p.ins, verbose=True, vm_space=int(os.environ.get('VMS', '96')))
    seq = insert_waits(seq)
    seq = insert_nops(seq)
    nmis, size = align8(seq, 0)
    print("attn body bytes", size, "misaligned", nmis, "insts", len(seq),
          "nops", sum(1 for i in seq if i.kind == 'nop'), "waits", sum(1 for i in seq if i.kind == 'wait'), file=sys.stderr)
    txt = PRE % dict(c=f2u(C_SCALE), thr=f2u(65536.0))
    dbgf = os.environ.get('DBG', '')
    if 'nokv' in dbgf: txt += " s_mov_b32 s10, 0\n s_mov_b32 s14, 0\n"
    if 'nox' in dbgf: txt += " s_mov_b32 s22, 0\n"
    if 'now' in dbgf: txt += " s_mov_b32 s18, 0\n"
    if 'noo' in dbgf: txt += " s_mov_b32 s26, 0\n"
    if STAMP:
        txt = txt.replace(" s_cbranch_scc1 A_END\n", " s_cbranch_scc1 A_END\n s_memtime s[40:41]\n s_waitcnt lgkmcnt(0)\n s_mov_b32 s41, s40\n")
    if os.environ.get('TWICE'): txt += " s_mov_b32 s90, 0\n"
    txt += ".p2align 3\nA_BODY:\n"
    txt += text_of(seq)
    if os.environ.get('TWICE'):
        txt += " s_waitcnt vmcnt(0) lgkmcnt(0)\n s_barrier\n s_add_u32 s90, s90, 1\n s_cmp_lt_u32 s90, 2\n s_cbranch_scc1 A_BODY\n"
    if STAMP:
        txt += " s_memtime s[42:43]\n s_waitcnt lgkmcnt(0)\n"
        txt += " v_writelane_b32 v215, s42, 48\n v_writelane_b32 v215, s41, 49\n v_mov_b32 v240, v215\n"
        txt += " s_add_u32 s24, s52, 0x4000000\n s_addc_u32 s25, s53, 0\n s_mov_b32 s26, 0x100000\n"
        txt += " v_mbcnt_lo_u32_b32 v241, -1, 0\n v_mbcnt_hi_u32_b32 v241, -1, v241\n v_lshlrev_b32 v241, 2, v241\n"
        txt += " s_lshl_b32 s5, s2, 10\n s_lshr_b32 s6, s28, 3\n s_add_u32 s5, s5, s6\n"
        txt += " buffer_store_dword v240, v241, s[24:27], s5 offen\n"
    txt += "A_END:\n s_endpgm\n"
    txt += "".join(g.stubs)
    txt += g.rare(0) + g.rare(1)
    return txt

if __name__ == '__main__':
    t = gen_attn()
    open('attn_body.s', 'w').write(t)
```

```python
import sys, math
sys.path.insert(0, 'dev')
from sched import *

import os
NB = int(os.environ.get('NB', '16'))
OB = A(0, 8 * NB)
NFR = 8
FR = V(128, 4 * NFR)
ACC = V(160, 32)
AA = [V(192, 4), V(196, 4)]
vB = [V(200), V(201)]
vW = [V(202), V(203)]
vOut = V(204)
T = V(208, 16)
sO = S(8, 4); sW = S(12, 4); sOut = S(16, 4)
sWB = S(28)
sT = [S(32), S(33), S(34), S(35)]
NST = 32
NSL = 8

STAMP = False
class Gen2:
    def __init__(self):
        self.p = Prog(); self.fr = 0
    def dma(self, st, pin=None):
        if st >= NST: return
        p = self.p
        slot = st % NSL
        rel = 'REL%d' % (st - NSL)
        ii = []
        for hh in range(2):
            ii.append(p.salu('s_add_u32', 'm0', sWB, slot * 16384 + hh * 8192, extra_rd=[rel]))
            s = sT[hh]
            ii.append(p.salu('s_mov_b32', s, (st * 128 + hh * 64) * 1024, scc=False))
            for i in range(2):
                ins = p.vmem("buffer_load_dwordx4 %s, %s, %s offen%s lds" % (vW[i], sW, s, " offset:1024" if i else ""),
                             regs_of(vW[i]) + regs_of(sW) + regs_of(s) + ['m0', rel], ['D%d_%d' % (st, 2 * hh + i)])
                if pin is not None: ins.pin = pin + 8 * (2 * hh + i)
    def oload(self, k, pin=None):
        if k >= 128: return
        p = self.p
        s = sT[2 + ((k >> 2) & 1)]
        if k % 4 == 0:
            p.salu('s_mov_b32', s, k * 1024, scc=False)
        for qi in range(2):
            d = OB.sub((k % NB) * 8 + qi * 4, 4)
            ins = p.vmem("buffer_load_dwordx4 %s, %s, %s, %s offen offset:%d" % (d, vB[qi], sO, s, (k % 4) * 1024),
                   regs_of(vB[qi]) + regs_of(sO) + regs_of(s), regs_of(d))
            if pin is not None: ins.pin = pin + 2 * qi
    def end_stage(self, j):
        rd = []; wr = []
        for st in range(NST):
            if st == j + 2 or (j == -1 and st <= 1):
                rd += ['D%d_%d' % (st, i) for i in range(4)]; wr.append('PUB%d' % st)
        if j >= 0: wr.append('REL%d' % j)
        self.p.barrier(rd, wr)
        if STAMP:
            self.p.raw("s_memtime s[42:43]\n s_waitcnt lgkmcnt(0)\n s_mov_b32 s%d, s42" % (54 + j + 1), 'stamp', rd=['BAR'], wr=['BAR'], size=16, backbone=True)
        if j >= 0: self.dma(j + NSL, pin=2)
    def build(self):
        p = self.p
        for k in range(4): self.oload(k)
        self.dma(0)
        for k in range(4, 8): self.oload(k)
        self.dma(1)
        self.end_stage(-1)
        for k in range(8, 12): self.oload(k, pin=0)
        self.dma(2, pin=0)
        for k in range(12, 16): self.oload(k, pin=0)
        for st in range(3, NSL):
            self.dma(st, pin=0)
            for k in range(16 + 4 * (st - 3), min(NB, 16 + 4 * (st - 2))): self.oload(k, pin=0)
        for st in range(NST):
            slot = st % NSL
            for kl in range(4):
                k = st * 4 + kl
                for ct in range(4):
                    f = FR.sub(4 * (self.fr % NFR), 4); self.fr += 1
                    off = (slot % 4) * 16384 + kl * 4096
                    for jj in range(2):
                        p.ds_read('ds_read_b64_tr_b16', f.sub(2 * jj, 2), AA[slot // 4][ct], off + jj * 512,
                                  extra_rd=['PUB%d' % st], bonus=14)
                    for qi in range(2):
                        acc = ACC.sub((2 * ct + qi) * 4, 4)
                        p.mfma(16, acc, f, OB.sub((k % NB) * 8 + qi * 4, 4), 0 if k == 0 else acc)
                self.oload(k + NB, pin=1)
            self.end_stage(st)
        for ct in range(4):
            for qi in range(2):
                acc = ACC.sub((2 * ct + qi) * 4, 4)
                g = T.sub(2 * (2 * ct + qi), 2)
                p.valu('v_cvt_pk_bf16_f32', g[0], acc[0], acc[1])
                p.valu('v_cvt_pk_bf16_f32', g[1], acc[2], acc[3])
                so = '0' if qi == 0 else str(S(29))
                p.vmem("buffer_store_dwordx2 %s, %s, %s, %s offen offset:%d" % (g, vOut, sOut, so, ct * 32),
                       regs_of(g) + regs_of(vOut) + regs_of(sOut) + ([] if qi == 0 else regs_of(S(29))), [], store=True)

PRE2 = """
oproj_kernel:
 s_cmp_ge_u32 s2, 256
 s_cbranch_scc1 P_END
 s_load_dwordx4 s[44:47], s[0:1], 32
 s_load_dwordx2 s[52:53], s[0:1], 56
 s_and_b32 s5, s2, 7
 s_lshr_b32 s6, s2, 3
 s_and_b32 s4, s6, 7
 s_lshr_b32 s6, s6, 3
 s_lshl_b32 s5, s5, 2
 s_add_u32 s5, s5, s6
 s_lshr_b32 s3, s5, 1
 s_and_b32 s7, s5, 1
 v_and_b32 v208, 63, v0
 v_lshrrev_b32 v209, 6, v0
 s_nop 0
 v_readfirstlane_b32 s54, v209
 v_lshrrev_b32 v210, 4, v208
 v_bfe_u32 v211, v208, 2, 2
 v_and_b32 v212, 3, v208
 v_and_b32 v213, 15, v208
 s_lshl_b32 s28, s54, 11
 s_mov_b32 s29, 16384
 v_lshl_add_u32 v214, v210, 3, v211
 v_lshlrev_b32 v214, 7, v214
 v_lshrrev_b32 v215, 1, v211
 v_and_b32 v216, 1, v210
 v_lshl_add_u32 v215, v216, 1, v215
 v_lshl_add_u32 v214, v215, 5, v214
 v_lshrrev_b32 v215, 1, v212
 v_lshl_add_u32 v214, v215, 4, v214
 v_and_b32 v215, 1, v212
 v_lshl_add_u32 v192, v215, 3, v214
 v_xor_b32 v193, 32, v192
 v_xor_b32 v194, 64, v192
 v_xor_b32 v195, 96, v192
 v_add_u32 v196, 0x10000, v192
 v_add_u32 v197, 0x10000, v193
 v_add_u32 v198, 0x10000, v194
 v_add_u32 v199, 0x10000, v195
 s_lshl_b32 s5, s7, 3
 v_lshl_add_u32 v214, v209, 1, s5
 v_lshlrev_b32 v214, 17, v214
 v_lshl_add_u32 v200, v208, 4, v214
 v_add_u32 v201, 0x20000, v200
 v_lshrrev_b32 v214, 3, v208
 v_lshl_add_u32 v214, v209, 4, v214
 v_lshlrev_b32 v214, 10, v214
 v_and_b32 v215, 7, v208
 v_and_b32 v216, 1, v210
 v_lshlrev_b32 v216, 1, v216
 v_xor_b32 v215, v215, v216
 v_lshl_add_u32 v202, v215, 4, v214
 v_xor_b32 v203, 64, v202
 v_add_u32 v203, 7168, v203
 s_lshl_b32 s5, s7, 7
 v_lshl_add_u32 v214, v209, 5, s5
 v_add_u32 v214, v214, v213
 v_lshlrev_b32 v214, 10, v214
 v_lshl_add_u32 v204, v210, 3, v214
 s_waitcnt lgkmcnt(0)
 s_lshl_b32 s5, s3, 21
 s_add_u32 s8, s52, s5
 s_addc_u32 s9, s53, 0
 s_mov_b32 s10, 1966080
 s_mov_b32 s11, 0x20000
 s_lshl_b32 s5, s4, 7
 s_add_u32 s12, s44, s5
 s_addc_u32 s13, s45, 0
 s_sub_u32 s14, 4194304, s5
 s_mov_b32 s15, 0x20000
 s_mul_i32 s6, s3, 245760
 s_add_u32 s6, s6, s5
 s_add_u32 s16, s46, s6
 s_addc_u32 s17, s47, 0
 s_sub_u32 s18, 245760, s5
 s_mov_b32 s19, 0x20000
"""

def gen_oproj():
    g = Gen2(); g.build()
    seq = schedule(g.p.ins, verbose=True, mfma_res_lat=40, vm_space=int(os.environ.get('VMS2', '32')))
    seq = insert_waits(seq)
    seq = insert_nops(seq)
    nmis, size = align8(seq, 0)
    print("oproj body bytes", size, "misaligned", nmis, "insts", len(seq),
          "nops", sum(1 for i in seq if i.kind == 'nop'), "waits", sum(1 for i in seq if i.kind == 'wait'), file=sys.stderr)
    pre = PRE2; post = ""
    if STAMP:
        pre = pre.replace(" s_cbranch_scc1 P_END\n", " s_cbranch_scc1 P_END\n s_memtime s[40:41]\n s_waitcnt lgkmcnt(0)\n s_mov_b32 s41, s40\n")
        post += " s_memtime s[42:43]\n s_waitcnt lgkmcnt(0)\n v_mov_b32 v210, 0\n"
        for j in range(48): post += " v_writelane_b32 v210, s%d, %d\n" % (54 + min(j, 32), j)
        post += " v_writelane_b32 v210, s42, 48\n v_writelane_b32 v210, s41, 49\n"
        post += " s_add_u32 s24, s52, 0x4000000\n s_addc_u32 s25, s53, 0\n s_mov_b32 s26, 0x100000\n s_mov_b32 s27, 0x20000\n"
        post += " v_mbcnt_lo_u32_b32 v211, -1, 0\n v_mbcnt_hi_u32_b32 v211, -1, v211\n v_lshlrev_b32 v211, 2, v211\n"
        post += " s_lshl_b32 s5, s2, 10\n s_lshr_b32 s6, s28, 3\n s_add_u32 s5, s5, s6\n"
        post += " buffer_store_dword v210, v211, s[24:27], s5 offen\n"
    return pre + ".p2align 3\n" + text_of(seq) + post + "P_END:\n s_endpgm\n"

if __name__ == '__main__':
    open('oproj_body.s', 'w').write(gen_oproj())
```

```python
import re, sys

def R(kind, lo, n=1):
    return [(kind, lo + i) for i in range(n)]

def rtxt(kind, lo, n=1):
    if n == 1:
        return "%s%d" % (kind, lo)
    return "%s[%d:%d]" % (kind, lo, lo + n - 1)

class Reg:
    def __init__(self, kind, lo, n=1):
        self.kind, self.lo, self.n = kind, lo, n
    def __str__(self):
        return rtxt(self.kind, self.lo, self.n)
    def regs(self):
        return R(self.kind, self.lo, self.n)
    def sub(self, off, n=1):
        assert off + n <= self.n, (self, off, n)
        return Reg(self.kind, self.lo + off, n)
    def __getitem__(self, i):
        return self.sub(i, 1)

def V(lo, n=1): return Reg('v', lo, n)
def A(lo, n=1): return Reg('a', lo, n)
def S(lo, n=1): return Reg('s', lo, n)

def regs_of(x):
    if isinstance(x, Reg):
        return x.regs()
    if isinstance(x, str) and x in ('vcc', 'scc', 'm0', 'exec'):
        return [x]
    return []

class Inst:
    __slots__ = ('text', 'kind', 'rd', 'wr', 'size', 'cost', 'idx', 'preds', 'succs', 'backbone',
                 'deadline', 'passes', 'srcc', 'srcab', 'emitted', 't', 'bonus', 'e64able', 'tag', 'pin')
    def __init__(self, text, kind, rd=(), wr=(), size=8, cost=4, backbone=False, passes=0, srcc=(), srcab=(),
                 bonus=0, e64able=False, tag=None):
        self.text = text; self.kind = kind
        self.rd = list(rd); self.wr = list(wr)
        self.size = size; self.cost = cost; self.backbone = backbone
        self.passes = passes; self.srcc = list(srcc); self.srcab = list(srcab)
        self.preds = set(); self.succs = set()
        self.deadline = None; self.emitted = False; self.t = None
        self.bonus = bonus; self.e64able = e64able; self.tag = tag; self.pin = None

TRANS = ('v_exp_f32', 'v_rcp_f32', 'v_log_f32', 'v_rsq_f32', 'v_sqrt_f32')
VOP3_ONLY = ('v_cvt_pk_bf16_f32', 'v_max3_f32', 'v_fma_f32', 'v_add3_u32', 'v_lshl_add_u32', 'v_lshl_or_b32',
             'v_mul_lo_u32', 'v_and_or_b32', 'v_bfe_u32', 'v_mad_u32_u24', 'v_pk_mul_f32', 'v_pk_add_f32',
             'v_accvgpr_read_b32', 'v_accvgpr_write_b32', 'v_xad_u32', 'v_add_lshl_u32', 'v_perm_b32', 'v_or3_b32')

class Prog:
    def __init__(self):
        self.ins = []
    def add(self, i):
        self.ins.append(i); return i
    def valu(self, op, dst, *srcs, extra_rd=(), extra_wr=(), bonus=0, tag=None):
        rd = []
        for s in srcs: rd += regs_of(s)
        wr = regs_of(dst)
        txt = "%s %s, %s" % (op, dst, ", ".join(str(s) for s in srcs))
        lit = any((not isinstance(s, Reg)) and is_literal(s) for s in srcs)
        if op in VOP3_ONLY:
            size = 8; e64 = False
        else:
            size = 8 if lit else 4
            e64 = not lit
            if len(srcs) == 2 and not (isinstance(srcs[1], Reg) and srcs[1].kind == 'v'):
                size = 8; e64 = False
            if any(isinstance(s, str) and s.startswith('-v') for s in srcs):
                size = 8; e64 = False
        kind = 'trans' if op in TRANS else 'valu'
        if op.startswith('v_permlane'):
            kind = 'perm'; rd += regs_of(dst); wr += regs_of(srcs[0]); size = 4; e64 = False
        return self.add(Inst(txt, kind, rd + list(extra_rd), wr + list(extra_wr), size=size,
                             cost=8 if kind == 'trans' else 4, bonus=bonus, e64able=e64, tag=tag))
    def mfma(self, shape, d, a, b, c, extra_rd=(), extra_wr=(), tag=None):
        op = 'v_mfma_f32_32x32x16_bf16' if shape == 32 else 'v_mfma_f32_16x16x32_bf16'
        rd = regs_of(a) + regs_of(b) + regs_of(c)
        i = Inst("%s %s, %s, %s, %s" % (op, d, a, b, c), 'mfma', rd + list(extra_rd), regs_of(d) + list(extra_wr),
                 size=8, cost=8, backbone=True, passes=8 if shape == 32 else 4,
                 srcc=regs_of(c), srcab=regs_of(a) + regs_of(b), tag=tag)
        return self.add(i)
    def ds_read(self, op, dst, addr, offset, extra_rd=(), bonus=0):
        return self.add(Inst("%s %s, %s offset:%d" % (op, dst, addr, offset), 'lds', regs_of(addr) + list(extra_rd),
                             regs_of(dst), size=8, cost=4, bonus=bonus))
    def salu(self, op, dst, *srcs, scc=True, extra_rd=(), extra_wr=(), bonus=0):
        rd = []
        for s in srcs: rd += regs_of(s)
        wr = regs_of(dst) + (['scc'] if scc else [])
        lit = any((not isinstance(s, Reg)) and is_literal(s) for s in srcs)
        return self.add(Inst("%s %s, %s" % (op, dst, ", ".join(str(s) for s in srcs)), 'salu', rd + list(extra_rd),
                             wr + list(extra_wr), size=8 if lit else 4, cost=4, bonus=bonus))
    def vmem(self, text, rd, wr, cost=8, bonus=0, store=False):
        return self.add(Inst(text, 'vmem_st' if store else 'vmem', rd, wr, size=8, cost=cost, bonus=bonus))
    def barrier(self, rd=(), wr=()):
        return self.add(Inst("s_barrier", 'barrier', list(rd) + ['BAR'], list(wr) + ['BAR'], size=4, cost=4, backbone=True))
    def raw(self, text, kind='misc', rd=(), wr=(), size=4, cost=4, backbone=False):
        return self.add(Inst(text, kind, rd, wr, size=size, cost=cost, backbone=backbone))

def is_literal(s):
    if isinstance(s, Reg): return False
    if isinstance(s, (int,)):
        return not (-16 <= s <= 64)
    if isinstance(s, float):
        return s not in (0.5, -0.5, 1.0, -1.0, 2.0, -2.0, 4.0, -4.0, 0.0)
    s = str(s)
    if s in ('vcc', 'exec', 'm0', 'scc'): return False
    if re.match(r'^-?[vas]\d', s) or re.match(r'^-?[vas]\[', s): return False
    try:
        v = int(s, 0); return not (-16 <= v <= 64)
    except ValueError:
        pass
    try:
        return float(s) not in (0.5, -0.5, 1.0, -1.0, 2.0, -2.0, 4.0, -4.0, 0.0)
    except ValueError:
        return True

def build_deps(ins):
    lastw = {}; readers = {}
    prev_bb = None
    for n, i in enumerate(ins):
        i.idx = n
        for r in i.rd:
            if r in lastw: i.preds.add(lastw[r])
        for r in i.wr:
            if r in lastw: i.preds.add(lastw[r])
            for q in readers.get(r, ()): i.preds.add(q)
        for r in i.rd:
            readers.setdefault(r, []).append(i)
        for r in i.wr:
            lastw[r] = i; readers[r] = []
        if i.backbone:
            if prev_bb is not None: i.preds.add(prev_bb)
            prev_bb = i
        i.preds.discard(i)
    for i in ins:
        for p in i.preds: p.succs.add(i)

def schedule(ins, gap_budget=24, mfma_res_lat=64, lds_lat=140, verbose=False, vm_space=96):
    build_deps(ins)
    bb = [i for i in ins if i.backbone]
    for k, b in enumerate(bb): b.deadline = k
    for i in reversed(ins):
        if i.backbone: continue
        d = 10 ** 9
        for s in i.succs:
            if s.deadline is not None: d = min(d, s.deadline)
        i.deadline = d
    out = []
    st = {'t': 0, 'free': 0, 'lastvm': -10**9, 'nbb': 0}
    pend = [i for i in ins if not i.backbone]
    rel = {}
    for i in ins:
        if i.backbone:
            rel[i] = i.deadline
        else:
            rel[i] = max([rel[p] for p in i.preds], default=-1)
    for i in pend:
        if i.pin is not None:
            i.deadline = min(i.deadline, rel[i] + i.pin)
    for i in reversed(ins):
        if i.backbone: continue
        for s in i.succs:
            i.deadline = min(i.deadline, s.deadline)
    def cls(i):
        if i.kind == 'lds' and i.bonus > 0: return 0
        if i.kind == 'vmem': return 1
        if i.kind == 'salu': return 1
        if i.kind == 'lds': return 2
        return 3
    def key(i): return (cls(i), i.deadline, i.idx)
    import heapq
    npred = {i: len(i.preds) for i in ins}
    ready = []
    for i in pend:
        if npred[i] == 0: ready.append(i)
    def lat_ok(i):
        if i.kind in ('vmem', 'vmem_st') and st['nbb'] > 0 and st['t'] < st['lastvm'] + vm_space: return False
        for p in i.preds:
            if p.kind == 'mfma' and i.kind != 'mfma' and (set(p.wr) & (set(i.rd) | set(i.wr))):
                if st['t'] < p.t + mfma_res_lat: return False
            if p.kind == 'mfma' and i.kind in ('valu', 'trans', 'perm') and (set(p.srcc) & set(i.wr)):
                if st['t'] < p.t + 40: return False
            if p.kind == 'trans' and out and out[-1] is p and i.kind != 'trans': return False
        return True
    def emit(i):
        assert not i.emitted
        if i.kind == 'mfma':
            st['t'] = max(st['t'], st['free'])
            i.t = st['t']; st['free'] = st['t'] + 4 * i.passes; st['t'] += i.cost
        else:
            i.t = st['t']; st['t'] += i.cost
        if i.kind in ('vmem', 'vmem_st'): st['lastvm'] = i.t
        if i.kind == 'mfma': st['nbb'] += 1
        i.emitted = True; out.append(i)
        if i in ready_set: ready_set.discard(i)
        for s in i.succs:
            npred[s] -= 1
            if npred[s] == 0 and not s.backbone: ready_set.add(s)
    ready_set = set(ready)
    def force(i):
        stack = [p for p in i.preds if not p.emitted]
        if stack:
            need = set()
            while stack:
                p = stack.pop()
                if p in need or p.emitted: continue
                need.add(p); stack += [q for q in p.preds if not q.emitted]
            for p in sorted(need, key=lambda x: x.idx):
                assert not p.backbone or p.emitted, "backbone order violation"
                emit(p)
        emit(i)
    for b in bb:
        while True:
            room = st['free'] - st['t']
            if b.kind != 'mfma': room = max(room, 0)
            cands = [i for i in ready_set if i.cost <= room and lat_ok(i)]
            if not cands:
                break
            c = min(cands, key=key)
            emit(c)
        force(b)
    rest = [i for i in ins if not i.emitted]
    for i in sorted(rest, key=lambda x: x.idx):
        if not i.emitted: force(i)
    if verbose: print("sched est cycles", st['t'], file=sys.stderr)
    return out

def insert_waits(seq, vm_init=(), lg_init=()):
    out = []
    vm = []
    lg = []
    for i in seq:
        touched = set(i.rd) | set(i.wr)
        nv = None; nl = None
        for k, p in enumerate(vm):
            if p.kind == 'vmem' and (set(p.wr) & touched): nv = len(vm) - 1 - k
            if p.kind == 'vmem_st' and ('STORES' in touched): nv = len(vm) - 1 - k
        for k, p in enumerate(lg):
            if set(p.wr) & touched: nl = len(lg) - 1 - k
        if nv is not None or nl is not None:
            parts = []
            if nv is not None:
                nv = min(nv, 63); parts.append("vmcnt(%d)" % nv); vm = vm[len(vm) - nv:] if nv else []
            if nl is not None:
                nl = min(nl, 15); parts.append("lgkmcnt(%d)" % nl); lg = lg[len(lg) - nl:] if nl else []
            out.append(Inst("s_waitcnt " + " ".join(parts), 'wait', size=4))
        out.append(i)
        if i.kind in ('vmem', 'vmem_st'): vm.append(i)
        if i.kind == 'lds':
            lg.append(i)
    return out

def states(i):
    if i.text.startswith('s_nop'):
        return int(i.text.split()[1]) + 1
    return 1

def insert_nops(seq):
    out = []
    VAL = ('valu', 'trans', 'perm')
    XDL_RD = {4: 8, 8: 12}
    XDL_OVL = {4: 6, 8: 10}
    XDL_WAR = {4: 3, 8: 7}
    def need_for(i):
        need = 0
        dist = 0
        for p in reversed(out[-40:]):
            req = 0
            pw = set(p.wr)
            if p.kind in VAL:
                if i.kind == 'mfma' and pw & set(i.rd): req = max(req, 2)
                if i.kind == 'perm' and pw & (set(i.rd)): req = max(req, 2)
                if p.kind == 'trans' and i.kind in ('valu', 'perm') and pw & set(i.rd): req = max(req, 1)
                if i.text.startswith('v_readfirstlane') or i.text.startswith('v_readlane'):
                    if pw & set(i.rd): req = max(req, 1)
                sw = {r for r in pw if r == 'vcc' or (isinstance(r, tuple) and r[0] == 's')}
                if sw & set(i.rd):
                    if i.kind in VAL: req = max(req, 2)
                    if i.kind in ('vmem', 'vmem_st'): req = max(req, 5)
            if p.kind == 'mfma':
                if i.kind == 'mfma':
                    if pw & set(i.srcab): req = max(req, XDL_RD[p.passes])
                    ov = pw & set(i.srcc)
                    if ov and not (set(i.srcc) == pw and i.passes == p.passes): req = max(req, XDL_OVL[p.passes])
                    if (pw & set(i.wr)) and not (set(i.srcc) == pw): req = max(req, XDL_OVL[p.passes])
                elif i.kind in VAL or i.kind in ('vmem', 'vmem_st', 'lds'):
                    if pw & (set(i.rd) | set(i.wr)): req = max(req, XDL_RD[p.passes])
                if i.kind in VAL and set(p.srcc) & set(i.wr): req = max(req, XDL_WAR[p.passes])
            if p.kind == 'vmem_st' and i.kind in VAL + ('lds', 'vmem') and (set(p.rd) & set(i.wr)):
                req = max(req, 2)
            if p.kind == 'salu' and 'm0' in pw and i.kind == 'vmem' and 'm0' in i.rd: req = max(req, 1)
            need = max(need, req - dist)
            dist += states(p)
        return need
    for i in seq:
        n = need_for(i)
        while n > 0:
            k = min(n, 16)
            out.append(Inst("s_nop %d" % (k - 1), 'nop', size=4)); n -= k
        out.append(i)
    return out

def align8(seq, start=0):
    pos = start
    run = []
    nmis = 0
    for i in seq:
        if i.size == 8:
            if pos % 8 == 4:
                c = [j for j in run if j.e64able]
                if c:
                    j = c[-1]
                    op, rest = j.text.split(' ', 1)
                    j.text = op + '_e64 ' + rest; j.size = 8; j.e64able = False
                    pos += 4
                else:
                    nmis += 1
            run = []
        else:
            run.append(i)
        pos += i.size
    return nmis, pos

def text_of(seq):
    return "".join(" " + i.text + "\n" for i in seq)
```

```python
import sys
sys.path.insert(0, 'dev')
import gen1, gen2
HDR = """; standalone__gqa_block_cached__near_ridge : generated by dev/build.py (own generator)
; @launch kernel=attn_kernel grid=(256,1,1) block=(256,1,1) lds=163840
; @launch kernel=oproj_kernel grid=(256,1,1) block=(256,1,1) lds=131072
.amdgcn_target "amdgcn-amd-amdhsa--gfx950"
.text
"""
def kd(name, vg, acc):
    return """.amdhsa_kernel %s
  .amdhsa_next_free_vgpr %d
  .amdhsa_next_free_sgpr 102
  .amdhsa_accum_offset %d
  .amdhsa_group_segment_fixed_size 0
  .amdhsa_kernarg_size 64
  .amdhsa_user_sgpr_count 2
  .amdhsa_user_sgpr_kernarg_segment_ptr 1
  .amdhsa_system_sgpr_workgroup_id_x 1
.end_amdhsa_kernel
""" % (name, vg, acc)
def build(path):
    t = HDR
    t += ".globl attn_kernel\n.p2align 8\n.type attn_kernel,@function" + gen1.gen_attn()
    t += ".globl oproj_kernel\n.p2align 8\n.type oproj_kernel,@function" + gen2.gen_oproj() + 'CODE_END:\n'
    t += '.section .rodata,"a"\n.p2align 6\n' + kd('attn_kernel', 512, 256) + '.p2align 6\n' + kd('oproj_kernel', gen2.VGPRS[0], gen2.VGPRS[1])
    open(path, 'w').write(t)
    print("bytes", len(t), file=sys.stderr)
if __name__ == '__main__':
    if len(sys.argv) > 2 and sys.argv[2] == 'stamp': gen1.STAMP = True
    if len(sys.argv) > 2 and sys.argv[2] == 'stamp2': gen2.STAMP = True
    build(sys.argv[1] if len(sys.argv) > 1 else 'standalone__gqa_block_cached__near_ridge.s')
```

```python
import sys, math, os
sys.path.insert(0, 'dev')
from sched import *

C_SCALE = (128 ** -0.5) * math.log2(math.e)
import struct
def f2u(f): return struct.unpack('<I', struct.pack('<f', f))[0]

Q   = V(0, 64)
SB_ = [V(64, 32), V(96, 32)]
PB_ = [V(128, 16), V(144, 16)]
NM  = V(160, 32)
QACC = V(64, 128)
KA  = V(192, 8)
VA  = V(200, 4)
XC  = V(204, 4)
vKd = [V(208), V(209)]
vVd = V(210); vWd = V(211); vX = [V(212), V(213)]; vO = V(214)
L   = [V(216), V(217)]
T   = V(240, 16)
XA  = V(244, 4)
OACC = A(0, 128)
NXB = 4
XB  = A(128, 32 * NXB)
NFR = 5
FR  = V(220, 4 * NFR)

sK = S(8, 4); sV = S(12, 4); sW = S(16, 4); sX = S(20, 4); sO = S(24, 4)
sWB = S(28); sC = S(29); sTHR = S(30); sWB8 = S(31)
sT = [S(32), S(33), S(34), S(35)]
sRET = S(40, 2)
sOH = S(36)
sXT = [S(44), S(45), S(46), S(47)]
sXJ = S(60, 8)
sWJ = S(68, 8)
vST = V(215)

def qfrag(qt, s): return Q.sub(qt * 32 + s * 4, 4)
def stile(p, qt): return SB_[p].sub(qt * 16, 16)
def pfrag(p, qt, ks): return PB_[p].sub(qt * 8 + ks * 4, 4)
def nmt(qt): return NM.sub(qt * 16, 16)
def qacc(t, qt): return QACC.sub((2 * t + qt) * 16, 16)
def oacc(t, qt): return OACC.sub((2 * t + qt) * 16, 16)
def xfrag(i, qt, s): return XB.sub((i % NXB) * 32 + qt * 16 + s * 4, 4)

STAMP = False
WARM = int(os.environ.get('WARM', '1'))
VLA = int(os.environ.get('VLA', '5'))
KD0 = [int(x) for x in os.environ.get('KD0', '2,3,4,5,7,8,8,9').split(',')]
KVNT = os.environ.get('KVNT', ' nt')
class Gen:
    def __init__(self, nheads=2):
        self.p = Prog()
        self.fr = 0
        self.nheads = nheads
        self.tmpi = 0
        self.stubs = []
        self.xsi = 0
        self.ring = [[], []]
        for hd in range(nheads):
            base = 24 * hd
            for n in range(16):
                self.ring[1].append(('W', hd, n, base + (n >> 1)))
            for n in range(16):
                self.ring[0].append(('K', hd, n, base + (8 if n <= 1 else 7 + n)))
                self.ring[1].append(('V', hd, n, base + (9 + n if n <= 13 else 23)))
        self.xplan = {}
        st0 = 'ABCABCBC'
        d0 = [-2, -2, -2, -1, -1, 0, 2, 3]
        r0 = [-1, -1, 0, 1, 2, 3, 4, 5]
        for j in range(8): self.xplan[j] = (st0[j], d0[j], r0[j])
        for hd in range(1, nheads):
            b = 24 * hd
            st1 = 'CCCCCCCC'
            d1 = [b - 17, b - 14, b - 11, b - 8, b - 5, b + 0, b + 2, b + 4]
            r1 = [b - 14, b - 11, b - 8, b - 5, b + 0, b + 2, b + 4, b + 5.5]
            for j in range(8): self.xplan[8 * hd + j] = (st1[j], d1[j], r1[j])
        self.stage_last_read = {}
        self.k_gate = {}
    def unit_pos(self, typ, hd, n):
        r = 0 if typ == 'K' else 1
        for k, u in enumerate(self.ring[r]):
            if u[0] == typ and u[1] == hd and u[2] == n: return r, k
        raise KeyError
    def next_frag(self):
        f = FR.sub(4 * (self.fr % NFR), 4); self.fr += 1; return f
    def dma(self, r, k, pin=None, gate=()):
        if k >= len(self.ring[r]): return
        p = self.p
        typ, hd, n, ns = self.ring[r][k]
        slot = k % 8
        lds = r * 65536 + slot * 8192
        tok = 'D%d_%d' % (r, k)
        rel = ['REL%d_%d' % (r, k - 8)] + list(gate)
        st = sT[2 * r]; st2 = sT[2 * r + 1]
        ii = []
        ii.append(p.salu('s_add_u32', 'm0', sWB, lds, extra_rd=rel))
        if typ == 'W':
            so = (32 * (n & 1)) * 8192 + hd * 256
            ii.append(p.salu('s_add_u32', st, sWJ[n >> 1], so))
            ii.append(p.salu('s_add_u32', st2, sWJ[n >> 1], so + 65536 - 1024))
            ii.append(p.vmem("buffer_load_dwordx4 %s, %s, %s offen lds" % (vWd, sW, st),
                   regs_of(vWd) + regs_of(sW) + regs_of(st) + ['m0'] + rel, [tok + 'a']))
            ii.append(p.vmem("buffer_load_dwordx4 %s, %s, %s offen offset:1024 lds" % (vWd, sW, st2),
                   regs_of(vWd) + regs_of(sW) + regs_of(st2) + ['m0'] + rel, [tok + 'b']))
        else:
            so = (hd * 512 + 32 * n) * 256
            srd = sK if typ == 'K' else sV
            v0 = vKd[0] if typ == 'K' else vVd
            v1 = vKd[1] if typ == 'K' else vVd
            ii.append(p.salu('s_mov_b32', st, so, scc=False))
            ii.append(p.vmem("buffer_load_dwordx4 %s, %s, %s offen%s lds" % (v0, srd, st, KVNT),
                   regs_of(v0) + regs_of(srd) + regs_of(st) + ['m0'] + rel, [tok + 'a']))
            ii.append(p.vmem("buffer_load_dwordx4 %s, %s, %s offen offset:1024%s lds" % (v1, srd, st, KVNT),
                   regs_of(v1) + regs_of(srd) + regs_of(st) + ['m0'] + rel, [tok + 'b']))
    def xdma(self, gi, pin=None, after=()):
        p = self.p
        stage, ds, rs = self.xplan[gi]
        j = gi % 8
        base = {'A': 0, 'B': 32768, 'C': 131072}[stage]
        gate = list(after) + self.stage_last_read.get(stage, [])
        if stage in 'AB':
            lo = 0 if stage == 'A' else 4
            hd = gi // 8
            if hd > 0:
                for sl in range(lo, lo + 4):
                    gate.append('REL0_%d' % (16 * (hd - 1) + 8 + sl))
        for n in range(8):
            if n % 4 == 0:
                p.salu('s_add_u32', 'm0', sWB8, base + (n >> 2) * 4096, extra_rd=gate)
            st = sXT[self.xsi % 4]; self.xsi += 1
            p.salu('s_add_u32', st, sXJ[j], n * 8192 - (n & 3) * 1024)
            ins = p.vmem("buffer_load_dwordx4 %s, %s, %s offen offset:%d lds" % (vX[n & 1], sX, st, (n & 3) * 1024),
                         regs_of(vX[n & 1]) + regs_of(sX) + regs_of(st) + ['m0'] + gate, ['XD%d_%d' % (gi, n)])
    def xread(self, gi, pin=None, after=()):
        p = self.p
        stage, ds, rs = self.xplan[gi]
        toks = ['XD%d_%d' % (gi, n) for n in range(8)]
        regs = []
        for qt in range(2):
            for s in range(4):
                d = xfrag(gi, qt, s)
                a = XC[s] if stage == 'C' else XA[s]
                off = qt * 4096 + (32768 if stage == 'B' else 0)
                ins = p.ds_read('ds_read_b128', d, a, off, extra_rd=toks[4 * qt: 4 * qt + 4] + list(after))
                regs += d.regs()
        self.stage_last_read[stage] = regs
    def pub_step(self, u):
        typ, hd, n, ns = u
        if typ == 'W': second = (n & 1) == 1
        elif typ == 'K': second = (n == 1)
        else: second = (n != 14)
        return max(-1, ns - (1 if second else 2))
    def pub_tok(self, r, k):
        return 'PUB%d_%d' % (r, k)
    def kdma_step(self, k):
        hd = k // 16; n = k % 16
        if k >= 8: return self.ring[0][k - 8][3]
        return KD0[n]
    def r1_step(self, k):
        rel = self.ring[1][k - 8][3]
        u = self.ring[1][k]
        if u[0] == 'V' and u[1] == 0: return max(rel, min(u[3] - VLA, 7 + u[2] // 2))
        return rel
    def end_step(self, j):
        rd = []; wr = []
        for r in range(2):
            for k, u in enumerate(self.ring[r]):
                ns = u[3]
                if self.pub_step(u) == j:
                    rd += ['D%d_%da' % (r, k), 'D%d_%db' % (r, k)]
                    wr.append(self.pub_tok(r, k))
                if ns == j:
                    wr.append('REL%d_%d' % (r, k))
        kd = [k for k in range(len(self.ring[0])) if self.kdma_step(k) == j]
        for k in kd:
            if k < 8:
                stage = 'A' if k < 4 else 'B'
                rd += self.stage_last_read.get(stage, [])
                wr.append('XREL%d' % k)
        self.p.barrier(rd, wr)
        if STAMP and j + 1 < 48 and (not os.environ.get('LIGHT') or j in (-1, 7, 8, 9, 22, 23, 31, 32, 33, 46)):
            self.p.raw("s_memtime s[42:43]\n s_waitcnt lgkmcnt(0)\n v_writelane_b32 v215, s42, %d" % (j + 1), 'stamp', rd=['BAR'], wr=['BAR'], size=16, backbone=True)
        bar = ['AFT%d' % j]
        self.p.ins[-1].wr.append(bar[0])
        npin = 2
        for gi, (stage, ds, rs) in sorted(self.xplan.items()):
            if rs == j: self.xread(gi, pin=npin, after=bar); npin += 4
        for k in range(8, len(self.ring[1])):
            if self.r1_step(k) == j:
                self.dma(1, k, gate=bar)
        for gi, (stage, ds, rs) in sorted(self.xplan.items()):
            if ds == j: self.xdma(gi, after=bar)
        for k in kd:
            self.dma(0, k, gate=(['XREL%d' % k] if k < 8 else []) + bar)
        self.touches(j, bar)
    def touches(self, j, bar):
        p = self.p
        vA = V(218); vD = V(219)
        if not WARM: return
        if j == 40:
            p.valu('v_bfe_u32', vA, vO, 4, 5, extra_rd=bar)
            p.valu('v_lshrrev_b32', vD, 11, vO)
            p.valu('v_lshl_add_u32', vA, vD, 5, vA)
            p.valu('v_lshlrev_b32', vA, 7, vA)
            p.salu('s_lshl_b32', S(90), S(2), 14)
            p.vmem("buffer_load_dword %s, %s, %s, %s offen" % (vD, vA, S(84, 4), S(90)), regs_of(vA) + regs_of(S(84, 4)) + regs_of(S(90)) + bar, regs_of(vD))
        if j == 17 and WARM > 1:
            p.valu('v_bfe_u32', vA, vO, 4, 6, extra_rd=bar)
            p.valu('v_lshrrev_b32', T[15], 11, vO)
            p.valu('v_lshl_add_u32', vA, T[15], 6, vA)
            p.valu('v_lshlrev_b32', vA, 10, vA)
            for b in (5, 6, 7):
                p.vmem("buffer_load_dword %s, %s, %s, %s offen" % (vD, vA, sX, sXJ[b]), regs_of(vA) + regs_of(sX) + regs_of(sXJ[b]) + bar, regs_of(vD))
        if j == 19 and WARM > 1:
            p.valu('v_bfe_u32', vA, vO, 5, 4, extra_rd=bar)
            p.valu('v_lshrrev_b32', T[15], 11, vO)
            p.valu('v_lshl_add_u32', vA, T[15], 4, vA)
            p.valu('v_lshlrev_b32', vA, 13, vA)
            p.valu('v_bfe_u32', T[15], vO, 4, 1)
            p.valu('v_lshl_add_u32', vA, T[15], 7, vA)
            for b in (4, 5, 6, 7):
                p.vmem("buffer_load_dword %s, %s, %s, %s offen offset:256" % (vD, vA, sW, sWJ[b]), regs_of(vA) + regs_of(sW) + regs_of(sWJ[b]) + bar, regs_of(vD))
    def read_k(self, hd, n, s):
        r, k = self.unit_pos('K', hd, n)
        f = self.next_frag()
        self.p.ds_read('ds_read_b128', f, KA[s], (k % 8) * 8192, extra_rd=[self.pub_tok(r, k)], bonus=14)
        return f
    def read_v(self, typ, hd, n, t, ks):
        r, k = self.unit_pos(typ, hd, n)
        f = self.next_frag()
        for jj in range(2):
            self.p.ds_read('ds_read_b64_tr_b16', f.sub(2 * jj, 2), VA[t], (k % 8) * 8192 + 4096 * ks + 2048 * jj,
                           extra_rd=[self.pub_tok(r, k)], bonus=14)
        return f
    def wstep(self, hd, i):
        p = self.p
        gi = hd * 8 + i
        order = [(s, t) for s in range(4) for t in range(4)]
        if i == 7: order = [(s, t) for t in range(4) for s in range(4)]
        cnt = 0
        for (s, t) in order:
            f = self.read_v('W', hd, 2 * i + (s >> 1), t, s & 1)
            for qt in range(2):
                c = 0 if (i == 0 and s == 0) else qacc(t, qt)
                mm = p.mfma(32, qacc(t, qt), f, xfrag(gi, qt, s), c)
            cnt += 1
            if cnt == 8:
                for g2, (stage, ds, rs) in sorted(self.xplan.items()):
                    if rs == 24 * hd + i - 0.5:
                        mm.wr.append('MID%d' % g2); self.xread(g2, after=['MID%d' % g2])
            if i == 7 and s == 3:
                for qt in range(2): self.qconv(t, qt)
        self.end_step(24 * hd + i)
    def qconv(self, t, qt):
        p = self.p
        a = qacc(t, qt)
        for r in range(16):
            p.valu('v_mul_f32', a[r], sC, a[r])
        for r in range(0, 16, 2):
            d = qfrag(qt, 2 * t + (r >> 3))[(r & 7) >> 1]
            p.valu('v_cvt_pk_bf16_f32', d, a[r], a[r + 1])
    def qk(self, hd, n, cinit):
        p = self.p
        par = n & 1
        for s in range(8):
            f = self.read_k(hd, n, s)
            for qt in range(2):
                if s == 0: c = nmt(qt) if cinit else 0
                else: c = stile(par, qt)
                p.mfma(32, stile(par, qt), f, qfrag(qt, s), c)
    def pv(self, hd, n, tile_major=False, after_tile=None):
        p = self.p
        par = n & 1
        order = [(ks, t) for ks in range(2) for t in range(4)]
        if tile_major: order = [(ks, t) for t in range(4) for ks in range(2)]
        for (ks, t) in order:
            f = self.read_v('V', hd, n, t, ks)
            for qt in range(2):
                c = 0 if (n == 0 and ks == 0) else oacc(t, qt)
                p.mfma(32, oacc(t, qt), f, pfrag(par, qt, ks), c)
            if after_tile and ks == 1: after_tile(t)
    def etmp(self):
        r = T[2 + (self.tmpi % 8)]; self.tmpi += 1; return r
    def softmax(self, u):
        p = self.p
        par = u & 1
        for qt in range(2):
            s = stile(par, qt); lt = T[qt]
            for r in range(0, 16, 2):
                e0 = self.etmp(); e1 = self.etmp()
                p.valu('v_exp_f32', e0, s[r]); p.valu('v_exp_f32', e1, s[r + 1])
                if r == 0:
                    p.valu('v_add_f32', lt, e0, e1)
                else:
                    p.valu('v_add_f32', lt, e0, lt); p.valu('v_add_f32', lt, e1, lt)
                p.valu('v_cvt_pk_bf16_f32', pfrag(par, qt, r >> 3)[(r & 7) >> 1], e0, e1)
    def first_max(self):
        p = self.p
        for qt in range(2):
            s = stile(0, qt); m = T[10 + 2 * qt]; m2 = T[11 + 2 * qt]
            p.valu('v_max3_f32', m, s[0], s[1], s[2])
            for r in range(3, 15, 2): p.valu('v_max3_f32', m, m, s[r], s[r + 1])
            p.valu('v_max_f32', m, s[15], m)
            p.valu('v_mov_b32', m2, m)
            p.valu('v_permlane32_swap_b32', m, m2)
            p.valu('v_max_f32', m, m, m2)
            for r in range(16): p.valu('v_sub_f32', s[r], s[r], m)
            for r in range(16): p.valu('v_sub_f32', nmt(qt)[r], 0, m)
            p.valu('v_mov_b32', L[qt], 0)
    def check(self, hd, u):
        p = self.p
        par = u & 1
        chk = T[14]
        p.valu('v_add_f32', chk, T[0], T[1])
        p.add(Inst("v_cmp_nge_f32 vcc, %s, %s" % (sTHR, chk), 'valu', regs_of(sTHR) + regs_of(chk), ['vcc'], size=4))
        lab = "R%d_%d" % (hd, u)
        touch = SB_[0].regs() + SB_[1].regs() + PB_[par].regs() + NM.regs() + L[0].regs() + L[1].regs() + T.sub(0, 16).regs() + OACC.regs()
        p.raw("s_cbranch_vccnz L%s\nB%s:" % (lab, lab), 'branch', rd=['vcc'] + touch, wr=touch, size=4, backbone=True)
        self.stubs.append("L%s:\n s_call_b64 %s, RARE%d\n s_branch B%s\n" % (lab, sRET, par, lab))
        for qt in range(2): p.valu('v_add_f32', L[qt], T[qt], L[qt])
    def epi_start(self):
        p = self.p
        for qt in range(2):
            t2 = T[14 + qt]
            p.valu('v_mov_b32', t2, L[qt])
            p.valu('v_permlane32_swap_b32', L[qt], t2)
            p.valu('v_add_f32', L[qt], L[qt], t2)
            p.valu('v_rcp_f32', L[qt], L[qt])
    def epi_tile(self, hd, t):
        p = self.p
        for qt in range(2):
            for rho in range(2):
                g = T.sub(8 * (self.tmpi % 2), 8); self.tmpi += 1
                o = oacc(t, qt)
                for r in range(8): p.valu('v_accvgpr_read_b32', g[r], o[8 * rho + r])
                for r in range(8): p.valu('v_mul_f32', g[r], L[qt], g[r])
                for r in range(4): p.valu('v_cvt_pk_bf16_f32', g[r], g[2 * r], g[2 * r + 1])
                so = S(76 + 2 * t + rho)
                ins = p.vmem("buffer_store_dwordx4 %s, %s, %s, %s offen offset:%d" % (g.sub(0, 4), vO, sO, so, qt * 1024),
                       regs_of(g.sub(0, 4)) + regs_of(vO) + regs_of(sO) + regs_of(so), [], store=True)
    def head(self, hd):
        p = self.p
        for i in range(8): self.wstep(hd, i)
        base = 24 * hd
        self.qk(hd, 0, False); self.qk(hd, 1, False)
        self.first_max(); self.softmax(0)
        for qt in range(2): p.valu('v_add_f32', L[qt], T[qt], L[qt])
        self.end_step(base + 8)
        for u in range(1, 15):
            self.qk(hd, u + 1, True); self.pv(hd, u - 1)
            if u == 1:
                for qt in range(2):
                    for r in range(16): p.valu('v_add_f32', stile(1, qt)[r], nmt(qt)[r], stile(1, qt)[r])
            self.softmax(u); self.check(hd, u)
            self.end_step(base + 8 + u)
        self.pv(hd, 14)
        self.softmax(15); self.check(hd, 15)
        self.epi_start()
        for t in range(8): p.salu('s_add_u32', S(76 + t), sOH, (hd * 8 + t) * 8192)
        self.pv(hd, 15, tile_major=True, after_tile=lambda t: self.epi_tile(hd, t))
        self.end_step(base + 23)
    def prologue_loads(self):
        self.dma(1, 0); self.xdma(0); self.dma(1, 1); self.dma(1, 2)
        self.xdma(1); self.dma(1, 3)
        dbgf = os.environ.get('DBG', '')
        extra = ''
        if 'nokv' in dbgf: extra += "\n s_mov_b32 s10, 0\n s_mov_b32 s14, 0"
        if 'noo' in dbgf: extra += "\n s_mov_b32 s26, 0"
        wr = (V(192, 16).regs() + V(208, 3).regs() + V(214).regs() + V(224, 16).regs() + XA.regs() + S(8, 8).regs() + S(24, 4).regs()
              + S(29, 2).regs() + S(36).regs() + sXJ.sub(2, 6).regs() + sWJ.sub(2, 6).regs() + ['scc', ('s', 5), ('s', 55)] + S(84, 6).regs() + V(218, 2).regs())
        self.p.raw((PRE_B % dict(c=f2u(C_SCALE), thr=f2u(65536.0), rot1=rot_text(2, 8))).lstrip() + extra + "\n.p2align 3", 'blob',
                   rd=['m0'], wr=wr, size=8, backbone=True)
        self.dma(1, 4)
        self.xdma(2)
        for k in range(5, 8): self.dma(1, k)
        self.end_step(-1)
    def rare(self, par):
        p = Prog()
        p.raw("s_nop 15"); p.raw("s_nop 7")
        for qt in range(2):
            s = stile(par, qt); sn = stile(1 - par, qt); m = T[10]; m2 = T[11]; f = T[12]
            p.valu('v_max3_f32', m, s[0], s[1], s[2])
            for r in range(3, 15, 2): p.valu('v_max3_f32', m, m, s[r], s[r + 1])
            p.valu('v_max_f32', m, s[15], m)
            p.valu('v_mov_b32', m2, m)
            p.valu('v_permlane32_swap_b32', m, m2)
            p.valu('v_max3_f32', m, m, m2, 0)
            p.valu('v_sub_f32', f, 0, m)
            p.valu('v_exp_f32', f, f)
            for r in range(16):
                p.valu('v_sub_f32', s[r], s[r], m)
                p.valu('v_sub_f32', sn[r], sn[r], m)
                p.valu('v_sub_f32', nmt(qt)[r], nmt(qt)[r], m)
            p.valu('v_mul_f32', L[qt], f, L[qt])
            for t in range(4):
                o = oacc(t, qt)
                for r in range(0, 16, 4):
                    for k in range(4): p.valu('v_accvgpr_read_b32', T[2 + k], o[r + k])
                    for k in range(4): p.valu('v_mul_f32', T[2 + k], f, T[2 + k])
                    for k in range(4): p.valu('v_accvgpr_write_b32', o[r + k], T[2 + k])
            lt = T[qt]
            for r in range(0, 16, 2):
                e0 = T[2]; e1 = T[3]
                p.valu('v_exp_f32', e0, s[r]); p.valu('v_exp_f32', e1, s[r + 1])
                p.raw("s_nop 0")
                if r == 0: p.valu('v_add_f32', lt, e0, e1)
                else:
                    p.valu('v_add_f32', lt, e0, lt); p.valu('v_add_f32', lt, e1, lt)
                p.valu('v_cvt_pk_bf16_f32', pfrag(par, qt, r >> 3)[(r & 7) >> 1], e0, e1)
        p.raw("s_nop 3")
        seq = insert_nops(p.ins)
        return "RARE%d:\n" % par + text_of(seq) + " s_setpc_b64 %s\n" % sRET

PRE = """
attn_kernel:
 s_cmp_ge_u32 s2, 256
 s_cbranch_scc1 A_END
 s_load_dwordx4 s[56:59], s[0:1], 0
 s_load_dwordx4 s[48:51], s[0:1], 16
 s_load_dwordx2 s[52:53], s[0:1], 56
 s_load_dwordx2 s[84:85], s[0:1], 32
 v_and_b32 v224, 63, v0
 v_lshrrev_b32 v225, 6, v0
 v_and_b32 v231, 15, v224
 v_readfirstlane_b32 s54, v225
 v_lshrrev_b32 v232, 4, v224
 s_and_b32 s5, s2, 7
 s_lshr_b32 s6, s2, 3
 s_lshr_b32 s3, s5, 2
 s_lshl_b32 s3, s3, 3
 s_lshr_b32 s7, s6, 2
 s_add_u32 s3, s3, s7
 s_and_b32 s4, s5, 3
 s_lshl_b32 s4, s4, 2
 s_and_b32 s7, s6, 3
 s_add_u32 s4, s4, s7
 s_lshl_b32 s28, s54, 11
 s_lshl_b32 s31, s54, 13
 v_lshlrev_b32 v234, 2, v232
 v_xor_b32 v234, v234, v231
 v_lshlrev_b32 v234, 4, v234
 v_lshrrev_b32 v235, 1, v225
 v_lshlrev_b32 v235, 4, v235
 v_and_b32 v236, 1, v225
 v_lshl_add_u32 v235, v236, 2, v235
 v_add_u32 v235, v235, v232
 v_lshl_add_u32 v211, v235, 13, v234
 v_lshrrev_b32 v235, 3, v224
 v_lshl_add_u32 v235, v225, 6, v235
 v_lshlrev_b32 v235, 10, v235
 v_and_b32 v236, 7, v224
 v_xor_b32 v236, v236, v232
 v_lshl_add_u32 v212, v236, 4, v235
 v_xor_b32 v213, 64, v212
%(rot0)s s_lshl_b32 s5, s4, 9
 s_mul_i32 s7, s3, 245760
 s_mov_b32 s19, 0x20000
 s_mov_b32 s22, 245760
 s_mov_b32 s23, 0x20000
 s_sub_u32 s18, 4194304, s5
 s_waitcnt lgkmcnt(0)
 s_add_u32 s16, s50, s5
 s_addc_u32 s17, s51, 0
 s_add_u32 s20, s56, s7
 s_addc_u32 s21, s57, 0
"""
PRE_B = """%(rot1)s v_lshrrev_b32 v226, 5, v224
 v_and_b32 v227, 31, v224
 v_bfe_u32 v228, v224, 4, 1
 v_bfe_u32 v229, v224, 2, 2
 v_and_b32 v230, 3, v224
 s_mov_b32 s29, %(c)#x
 s_mov_b32 s30, %(thr)#x
 s_lshl_b32 s36, s4, 17
 v_xor_b32 v233, v226, v231
 v_lshlrev_b32 v233, 4, v233
 v_lshl_add_u32 v192, v227, 8, v233
 v_xor_b32 v193, 32, v192
 v_xor_b32 v194, 64, v192
 v_xor_b32 v195, 96, v192
 v_xor_b32 v196, 128, v192
 v_xor_b32 v197, 160, v192
 v_xor_b32 v198, 192, v192
 v_xor_b32 v199, 224, v192
 v_lshl_add_u32 v233, v226, 2, v229
 v_lshlrev_b32 v233, 8, v233
 v_lshl_add_u32 v233, v229, 6, v233
 v_lshl_add_u32 v233, v228, 5, v233
 v_and_b32 v237, 1, v230
 v_lshl_add_u32 v233, v237, 4, v233
 v_lshrrev_b32 v237, 1, v230
 v_lshl_add_u32 v233, v237, 3, v233
 v_add_u32 v200, 0x10000, v233
 v_xor_b32 v201, 64, v200
 v_xor_b32 v202, 128, v200
 v_xor_b32 v203, 192, v200
 v_bfe_u32 v233, v227, 1, 3
 v_xor_b32 v233, v233, v226
 v_lshlrev_b32 v233, 4, v233
 v_lshl_add_u32 v233, v227, 7, v233
 v_lshl_add_u32 v244, v225, 13, v233
 v_xor_b32 v245, 32, v244
 v_xor_b32 v246, 64, v244
 v_xor_b32 v247, 96, v244
 v_add_u32 v204, 0x20000, v244
 v_add_u32 v205, 0x20000, v245
 v_add_u32 v206, 0x20000, v246
 v_add_u32 v207, 0x20000, v247
 v_lshl_add_u32 v233, v225, 3, v232
 v_and_b32 v237, 15, v233
 v_xor_b32 v237, v237, v231
 v_lshlrev_b32 v237, 4, v237
 v_lshl_add_u32 v208, v233, 8, v237
 v_xor_b32 v209, 64, v208
 v_lshl_add_u32 v210, v233, 8, v234
 v_lshlrev_b32 v235, 11, v225
 v_lshl_add_u32 v214, v224, 4, v235
 s_lshl_b32 s5, s3, 4
 s_add_u32 s5, s5, s4
 s_lshl_b32 s5, s5, 18
 s_add_u32 s8, s58, s5
 s_addc_u32 s9, s59, 0
 s_mov_b32 s10, 262144
 s_mov_b32 s11, 0x20000
 s_add_u32 s12, s48, s5
 s_addc_u32 s13, s49, 0
 s_mov_b32 s14, 262144
 s_mov_b32 s15, 0x20000
 s_lshl_b32 s5, s3, 21
 s_add_u32 s24, s52, s5
 s_addc_u32 s25, s53, 0
 s_mov_b32 s26, 2097152
 s_mov_b32 s27, 0x20000
 s_mov_b32 s86, 4194304
 s_mov_b32 s87, 0x20000
 s_getpc_b64 s[88:89]
A_PC:
 s_lshl_b32 s5, s6, 2
 s_add_u32 s5, s5, s54
 s_mul_hi_u32 s55, s5, 0x1c71c71d
 s_mul_i32 s55, s55, 9
 s_sub_u32 s5, s5, s55
 s_lshl_b32 s5, s5, 13
 v_lshlrev_b32 v218, 7, v224
 v_add_u32 v218, s5, v218
 v_min_u32 v218, CODE_END-A_PC-4, v218
 global_load_dword v219, v218, s[88:89]"""
def rot_text(lo, hi):
    t = ""
    for i in range(lo, hi):
        t += " s_add_u32 s55, s6, %d\\n s_and_b32 s55, s55, 7\\n s_lshl_b32 s%d, s55, 7\\n s_lshl_b32 s%d, s55, 19\\n" % (i, 60 + i, 68 + i)
    return t.replace("\\n", "\n")


def gen_attn():
    g = Gen(2)
    g.prologue_loads()
    for hd in range(2): g.head(hd)
    seq = schedule(g.p.ins, verbose=True, vm_space=int(os.environ.get('VMS', '48')))
    seq = insert_waits(seq)
    seq = insert_nops(seq)
    X = os.environ.get('EXP', '')
    if 'nobar' in X: seq = [i for i in seq if i.kind != 'barrier']
    if 'nodma' in X: seq = [i for i in seq if not (i.kind == 'vmem' and ' nt lds' in i.text)]
    if 'novw' in X: seq = [i for i in seq if not (i.kind == 'wait' and 'vmcnt' in i.text and 'lgkm' not in i.text)]
    if 'noexp' in X:
        for i in seq:
            if i.text.startswith('v_exp_f32'): i.text = i.text.replace('v_exp_f32', 'v_mov_b32')
    nmis, size = (align8(seq, 0) if 'align' in X else (0, 0))
    print("attn body bytes", size, "misaligned", nmis, "insts", len(seq),
          "nops", sum(1 for i in seq if i.kind == 'nop'), "waits", sum(1 for i in seq if i.kind == 'wait'), file=sys.stderr)
    txt = PRE % dict(rot0=rot_text(0, 2))
    dbgf = os.environ.get('DBG', '')
    if 'nox' in dbgf: txt += " s_mov_b32 s22, 0\n"
    if 'now' in dbgf: txt += " s_mov_b32 s18, 0\n"
    if STAMP:
        txt = txt.replace(" s_cbranch_scc1 A_END\n", " s_cbranch_scc1 A_END\n s_memtime s[40:41]\n s_memrealtime s[92:93]\n s_waitcnt lgkmcnt(0)\n s_mov_b32 s41, s40\n")
    if os.environ.get('TWICE'): txt += " s_mov_b32 s90, 0\n"
    txt += ".p2align 3\nA_BODY:\n"
    txt += text_of(seq)
    if os.environ.get('TWICE'):
        txt += " s_waitcnt vmcnt(0) lgkmcnt(0)\n s_barrier\n s_add_u32 s90, s90, 1\n s_cmp_lt_u32 s90, 2\n s_cbranch_scc1 A_BODY\n"
    if STAMP:
        txt += " s_memtime s[42:43]\n s_memrealtime s[94:95]\n s_waitcnt lgkmcnt(0)\n v_writelane_b32 v215, s92, 50\n v_writelane_b32 v215, s94, 51\n"
        txt += " v_writelane_b32 v215, s42, 48\n v_writelane_b32 v215, s41, 49\n v_mov_b32 v240, v215\n"
        txt += " s_add_u32 s24, s52, 0x8000000\n s_addc_u32 s25, s53, 0\n s_mov_b32 s26, 0x100000\n"
        txt += " v_mbcnt_lo_u32_b32 v241, -1, 0\n v_mbcnt_hi_u32_b32 v241, -1, v241\n v_lshlrev_b32 v241, 2, v241\n"
        txt += " s_lshl_b32 s5, s2, 10\n s_lshr_b32 s6, s28, 3\n s_add_u32 s5, s5, s6\n"
        txt += " buffer_store_dword v240, v241, s[24:27], s5 offen\n"
    txt += "A_END:\n s_endpgm\n"
    txt += "".join(g.stubs)
    txt += g.rare(0) + g.rare(1)
    return txt

if __name__ == '__main__':
    t = gen_attn()
    open('attn_body.s', 'w').write(t)
```

```python
import sys, math, os
sys.path.insert(0, 'dev')
from sched import *

NB = int(os.environ.get('NB', '32'))
OB = A(0, 4 * NB)
ACC = V(0, 32)
NFR = 8
FR = V(32, 4 * NFR)
AA = [V(64, 2), V(66, 2)]
vB = V(68); vW = V(69); vOut = V(70)
T = V(72, 8)
sO = S(8, 4); sW = S(12, 4); sOut = S(16, 4)
sWB = S(28); sROT = S(29)
sT = [S(32 + i) for i in range(6)]
sOS = [S(40 + i) for i in range(4)]
sWS = [S(44 + i) for i in range(4)]
sTMP = S(48)
NUNIT = 64; NST = 16
STAMP = False
PRE_U = int(os.environ.get('PREU', '3'))
WNT = os.environ.get('P2WNT', '')
ROT = int(os.environ.get('P2ROT', '1'))

class Gen2:
    def __init__(self):
        self.p = Prog(); self.fr = 0; self.ti = 0
        self.obase = set(); self.wbase = set()
    def stage_base(self, st, which):
        done = self.obase if which == 'o' else self.wbase
        reg = (sOS if which == 'o' else sWS)[st % 4]
        if st not in done:
            done.add(st)
            t = S(48 if which == 'o' else 49)
            self.p.salu('s_add_u32', t, sROT, st)
            self.p.salu('s_and_b32', t, t, 15)
            self.p.salu('s_lshl_b32', reg, t, 17 if which == 'o' else 18)
        return reg
    BPOS = [-1, 0, 1, 2] + list(range(3, 64, 4))
    def pub_pos(self, u):
        return max([b for b in self.BPOS if b <= u - 2] + [-1])
    def dma(self, u):
        if u >= NUNIT: return
        p = self.p
        slot = u % 16
        rel = ['REL%d' % (u - 16)]
        base = self.stage_base(u // 4, 'w')
        s0 = sT[self.ti % 4]; s1 = sT[(self.ti + 1) % 4]; self.ti += 2
        p.salu('s_add_u32', 'm0', sWB, slot * 8192, extra_rd=rel)
        p.salu('s_add_u32', s0, base, (u % 4) * 65536)
        p.salu('s_add_u32', s1, base, (u % 4) * 65536 + 3072)
        p.vmem("buffer_load_dwordx4 %s, %s, %s offen%s lds" % (vW, sW, s0, WNT),
               regs_of(vW) + regs_of(sW) + regs_of(s0) + ['m0'] + rel, ['D%da' % u])
        p.vmem("buffer_load_dwordx4 %s, %s, %s offen offset:1024%s lds" % (vW, sW, s1, WNT),
               regs_of(vW) + regs_of(sW) + regs_of(s1) + ['m0'] + rel, ['D%db' % u])
    def oload(self, k):
        if k >= 256: return
        p = self.p
        base = self.stage_base(k // 16, 'o')
        s = sT[4 + (k & 1)]
        p.salu('s_add_u32', s, base, (k % 16) * 8192)
        d = OB.sub(4 * (k % NB), 4)
        p.vmem("buffer_load_dwordx4 %s, %s, %s, %s offen" % (d, vB, sO, s),
               regs_of(vB) + regs_of(sO) + regs_of(s), regs_of(d))
    def bar(self, pos):
        rd = []; wr = []
        full = (pos % 4 == 3) or pos == -1
        for u in range(NUNIT):
            if self.pub_pos(u) == pos:
                rd += ['D%da' % u, 'D%db' % u]; wr.append('PUB%d' % u)
            if pos >= 0 and pos % 4 == 3 and u // 4 == pos // 4: wr.append('REL%d' % u)
        self.p.barrier(rd, wr)
        if STAMP and full:
            self.p.raw("s_memtime s[60:61]\n s_waitcnt lgkmcnt(0)\n v_writelane_b32 v80, s60, %d" % ((pos + 1) // 4), 'stamp', rd=['BAR'], wr=['BAR'], size=16, backbone=True)
        if pos >= 0 and pos % 4 == 3:
            for u in range(pos - 3, pos + 1): self.dma(u + 16)
    def build(self):
        p = self.p
        k = 0
        for u in range(PRE_U):
            self.dma(u)
            for _ in range(4): self.oload(k); k += 1
        pre = [i for i in p.ins if i.kind == 'vmem']
        self.bar(-1)
        [i for i in p.ins if i.kind == 'barrier'][0].xpreds = pre
        for u in range(PRE_U, 16):
            self.dma(u)
            for _ in range(4):
                if k < NB: self.oload(k); k += 1
        while k < NB: self.oload(k); k += 1
        for u in range(NUNIT):
            slot = u % 16
            for kl in range(4):
                k = u * 4 + kl
                for ct in range(2):
                    f = FR.sub(4 * (self.fr % NFR), 4); self.fr += 1
                    for jj in range(2):
                        p.ds_read('ds_read_b64_tr_b16', f.sub(2 * jj, 2), AA[slot // 8][ct], (slot % 8) * 8192 + kl * 2048 + jj * 1024,
                                  extra_rd=['PUB%d' % u], bonus=14)
                    a = ACC.sub(16 * ct, 16)
                    p.mfma(32, a, f, OB.sub(4 * (k % NB), 4), 0 if k == 0 else a)
                self.oload(k + NB)
            if u in self.BPOS and u < 63: self.bar(u)
        for ct in range(2):
            a = ACC.sub(16 * ct, 16)
            for rho in range(2):
                g = FR.sub(8 * ct + 4 * rho, 4)
                for n in range(4): p.valu('v_cvt_pk_bf16_f32', g[n], a[8 * rho + 2 * n], a[8 * rho + 2 * n + 1])
                p.vmem("buffer_store_dwordx4 %s, %s, %s, 0 offen offset:%d" % (g, vOut, sOut, ct * 64 + rho * 32),
                       regs_of(g) + regs_of(vOut) + regs_of(sOut), [], store=True)

PRE2 = """
oproj_kernel:
 s_cmp_ge_u32 s2, 256
 s_cbranch_scc1 P_END
 s_load_dwordx4 s[64:67], s[0:1], 32
 s_load_dwordx2 s[70:71], s[0:1], 56
 s_and_b32 s5, s2, 7
 s_lshr_b32 s6, s2, 3
 s_and_b32 s4, s6, 7
 s_lshr_b32 s6, s6, 3
 s_lshl_b32 s29, s5, %(rotsh)d
 s_lshl_b32 s5, s5, 2
 s_add_u32 s5, s5, s6
 s_lshr_b32 s3, s5, 1
 s_and_b32 s6, s5, 1
 v_and_b32 v72, 63, v0
 v_lshrrev_b32 v73, 6, v0
 v_lshrrev_b32 v74, 3, v72
 v_readfirstlane_b32 s56, v73
 s_lshl_b32 s57, s6, 2
 v_add_u32 v75, s57, v73
 v_lshlrev_b32 v75, 10, v75
 v_lshl_add_u32 v68, v72, 4, v75
 v_lshrrev_b32 v75, 2, v74
 v_lshlrev_b32 v75, 3, v75
 v_lshl_add_u32 v75, v73, 4, v75
 v_and_b32 v76, 3, v74
 v_add_u32 v75, v75, v76
 v_lshlrev_b32 v75, 10, v75
 v_bfe_u32 v76, v74, 1, 1
 v_lshlrev_b32 v76, 2, v76
 v_and_b32 v77, 7, v72
 v_xor_b32 v76, v76, v77
 v_lshl_add_u32 v69, v76, 4, v75
 s_lshl_b32 s28, s56, 11
 s_mov_b32 s10, 2097152
 s_mov_b32 s11, 0x20000
 s_lshl_b32 s58, s4, 7
 s_sub_u32 s14, 4194304, s58
 s_mov_b32 s15, 0x20000
 s_lshl_b32 s57, s3, 21
 s_waitcnt lgkmcnt(0)
 s_add_u32 s8, s70, s57
 s_addc_u32 s9, s71, 0
 s_add_u32 s12, s64, s58
 s_addc_u32 s13, s65, 0
"""
PRE2_B = """ s_mul_i32 s57, s3, 245760
 s_add_u32 s57, s57, s58
 s_add_u32 s16, s66, s57
 s_addc_u32 s17, s67, 0
 s_sub_u32 s18, 245760, s58
 s_mov_b32 s19, 0x20000
 v_lshrrev_b32 v74, 5, v72
 v_bfe_u32 v75, v72, 2, 2
 v_lshl_add_u32 v76, v74, 2, v75
 v_lshlrev_b32 v76, 7, v76
 v_lshrrev_b32 v77, 1, v75
 v_lshl_add_u32 v76, v77, 6, v76
 v_bfe_u32 v77, v72, 4, 1
 v_lshl_add_u32 v76, v77, 5, v76
 v_and_b32 v77, 1, v72
 v_lshl_add_u32 v76, v77, 4, v76
 v_bfe_u32 v77, v72, 1, 1
 v_lshl_add_u32 v64, v77, 3, v76
 v_xor_b32 v65, 64, v64
 v_add_u32 v66, 0x10000, v64
 v_add_u32 v67, 0x10000, v65
 s_lshl_b32 s57, s6, 7
 v_lshl_add_u32 v76, v73, 5, s57
 v_and_b32 v77, 31, v72
 v_add_u32 v76, v76, v77
 v_lshlrev_b32 v76, 10, v76
 v_lshl_add_u32 v70, v74, 4, v76
.p2align 3"""

def gen_oproj():
    g = Gen2(); g.build()
    ins = g.p.ins
    wr = V(64, 4).regs() + V(70, 10).regs() + S(16, 4).regs() + [('s', 57), 'scc']
    blob = Inst(PRE2_B.lstrip(), 'blob', rd=['m0'], wr=wr, size=8, backbone=True)
    pos = next(n for n, i in enumerate(ins) if i.kind == 'barrier')
    ins.insert(pos, blob)
    seq = schedule(ins, verbose=True, vm_space=int(os.environ.get('VMS2', '32')), vm_force=True)
    seq = insert_waits(seq)
    seq = insert_nops(seq)
    nmis, size = 0, 0
    print("oproj body bytes", size, "misaligned", nmis, "insts", len(seq),
          "nops", sum(1 for i in seq if i.kind == 'nop'), "waits", sum(1 for i in seq if i.kind == 'wait'), file=sys.stderr)
    pre = PRE2 % dict(rotsh=1 if ROT else 8); post = ""
    if os.environ.get('HALF'):
        pre = pre.replace(" s_load_dwordx4 s[64:67]", " s_bitcmp1_b32 s2, %s\n s_cbranch_scc1 P_END\n s_load_dwordx4 s[64:67]" % os.environ['HALF'])
    if STAMP:
        pre = pre.replace(" s_cbranch_scc1 P_END\n", " s_cbranch_scc1 P_END\n s_memtime s[60:61]\n s_memrealtime s[74:75]\n s_waitcnt lgkmcnt(0)\n s_mov_b32 s63, s60\n")
        post += " s_memtime s[60:61]\n s_memrealtime s[76:77]\n s_waitcnt lgkmcnt(0)\n v_writelane_b32 v80, s74, 50\n v_writelane_b32 v80, s76, 51\n"
        post += " v_writelane_b32 v80, s60, 48\n v_writelane_b32 v80, s63, 49\n"
        post += " s_add_u32 s24, s70, 0x8000000\n s_addc_u32 s25, s71, 0\n s_mov_b32 s26, 0x100000\n s_mov_b32 s27, 0x20000\n"
        post += " v_mbcnt_lo_u32_b32 v81, -1, 0\n v_mbcnt_hi_u32_b32 v81, -1, v81\n v_lshlrev_b32 v81, 2, v81\n"
        post += " s_lshl_b32 s5, s2, 10\n s_lshr_b32 s6, s28, 3\n s_add_u32 s5, s5, s6\n"
        post += " buffer_store_dword v80, v81, s[24:27], s5 offen\n"
    return pre + ".p2align 3\n" + text_of(seq) + post + "P_END:\n s_endpgm\n"
VGPRS = (96 + 4 * NB, 96)

if __name__ == '__main__':
    open('oproj_body.s', 'w').write(gen_oproj())
```

```python
import re, sys

def R(kind, lo, n=1):
    return [(kind, lo + i) for i in range(n)]

def rtxt(kind, lo, n=1):
    if n == 1:
        return "%s%d" % (kind, lo)
    return "%s[%d:%d]" % (kind, lo, lo + n - 1)

class Reg:
    def __init__(self, kind, lo, n=1):
        self.kind, self.lo, self.n = kind, lo, n
    def __str__(self):
        return rtxt(self.kind, self.lo, self.n)
    def regs(self):
        return R(self.kind, self.lo, self.n)
    def sub(self, off, n=1):
        assert off + n <= self.n, (self, off, n)
        return Reg(self.kind, self.lo + off, n)
    def __getitem__(self, i):
        return self.sub(i, 1)

def V(lo, n=1): return Reg('v', lo, n)
def A(lo, n=1): return Reg('a', lo, n)
def S(lo, n=1): return Reg('s', lo, n)

def regs_of(x):
    if isinstance(x, Reg):
        return x.regs()
    if isinstance(x, str) and x in ('vcc', 'scc', 'm0', 'exec'):
        return [x]
    return []

class Inst:
    __slots__ = ('text', 'kind', 'rd', 'wr', 'size', 'cost', 'idx', 'preds', 'succs', 'backbone',
                 'deadline', 'passes', 'srcc', 'srcab', 'emitted', 't', 'bonus', 'e64able', 'tag', 'pin', 'xpreds')
    def __init__(self, text, kind, rd=(), wr=(), size=8, cost=4, backbone=False, passes=0, srcc=(), srcab=(),
                 bonus=0, e64able=False, tag=None):
        self.text = text; self.kind = kind
        self.rd = list(rd); self.wr = list(wr)
        self.size = size; self.cost = cost; self.backbone = backbone
        self.passes = passes; self.srcc = list(srcc); self.srcab = list(srcab)
        self.preds = set(); self.succs = set()
        self.deadline = None; self.emitted = False; self.t = None
        self.bonus = bonus; self.e64able = e64able; self.tag = tag; self.pin = None; self.xpreds = []

TRANS = ('v_exp_f32', 'v_rcp_f32', 'v_log_f32', 'v_rsq_f32', 'v_sqrt_f32')
VOP3_ONLY = ('v_cvt_pk_bf16_f32', 'v_max3_f32', 'v_fma_f32', 'v_add3_u32', 'v_lshl_add_u32', 'v_lshl_or_b32',
             'v_mul_lo_u32', 'v_and_or_b32', 'v_bfe_u32', 'v_mad_u32_u24', 'v_pk_mul_f32', 'v_pk_add_f32',
             'v_accvgpr_read_b32', 'v_accvgpr_write_b32', 'v_xad_u32', 'v_add_lshl_u32', 'v_perm_b32', 'v_or3_b32')

class Prog:
    def __init__(self):
        self.ins = []
    def add(self, i):
        self.ins.append(i); return i
    def valu(self, op, dst, *srcs, extra_rd=(), extra_wr=(), bonus=0, tag=None):
        rd = []
        for s in srcs: rd += regs_of(s)
        wr = regs_of(dst)
        txt = "%s %s, %s" % (op, dst, ", ".join(str(s) for s in srcs))
        lit = any((not isinstance(s, Reg)) and is_literal(s) for s in srcs)
        if op in VOP3_ONLY:
            size = 8; e64 = False
        else:
            size = 8 if lit else 4
            e64 = not lit
            if len(srcs) == 2 and not (isinstance(srcs[1], Reg) and srcs[1].kind == 'v'):
                size = 8; e64 = False
            if any(isinstance(s, str) and s.startswith('-v') for s in srcs):
                size = 8; e64 = False
        kind = 'trans' if op in TRANS else 'valu'
        if op.startswith('v_permlane'):
            kind = 'perm'; rd += regs_of(dst); wr += regs_of(srcs[0]); size = 4; e64 = False
        return self.add(Inst(txt, kind, rd + list(extra_rd), wr + list(extra_wr), size=size,
                             cost=8 if kind == 'trans' else 4, bonus=bonus, e64able=e64, tag=tag))
    def mfma(self, shape, d, a, b, c, extra_rd=(), extra_wr=(), tag=None):
        op = 'v_mfma_f32_32x32x16_bf16' if shape == 32 else 'v_mfma_f32_16x16x32_bf16'
        rd = regs_of(a) + regs_of(b) + regs_of(c)
        i = Inst("%s %s, %s, %s, %s" % (op, d, a, b, c), 'mfma', rd + list(extra_rd), regs_of(d) + list(extra_wr),
                 size=8, cost=8, backbone=True, passes=8 if shape == 32 else 4,
                 srcc=regs_of(c), srcab=regs_of(a) + regs_of(b), tag=tag)
        return self.add(i)
    def ds_read(self, op, dst, addr, offset, extra_rd=(), bonus=0):
        return self.add(Inst("%s %s, %s offset:%d" % (op, dst, addr, offset), 'lds', regs_of(addr) + list(extra_rd),
                             regs_of(dst), size=8, cost=4, bonus=bonus))
    def salu(self, op, dst, *srcs, scc=True, extra_rd=(), extra_wr=(), bonus=0):
        rd = []
        for s in srcs: rd += regs_of(s)
        wr = regs_of(dst) + (['scc'] if scc else [])
        lit = any((not isinstance(s, Reg)) and is_literal(s) for s in srcs)
        return self.add(Inst("%s %s, %s" % (op, dst, ", ".join(str(s) for s in srcs)), 'salu', rd + list(extra_rd),
                             wr + list(extra_wr), size=8 if lit else 4, cost=4, bonus=bonus))
    def vmem(self, text, rd, wr, cost=8, bonus=0, store=False):
        return self.add(Inst(text, 'vmem_st' if store else 'vmem', rd, wr, size=8, cost=cost, bonus=bonus))
    def barrier(self, rd=(), wr=()):
        return self.add(Inst("s_barrier", 'barrier', list(rd) + ['BAR'], list(wr) + ['BAR'], size=4, cost=4, backbone=True))
    def raw(self, text, kind='misc', rd=(), wr=(), size=4, cost=4, backbone=False):
        return self.add(Inst(text, kind, rd, wr, size=size, cost=cost, backbone=backbone))

def is_literal(s):
    if isinstance(s, Reg): return False
    if isinstance(s, (int,)):
        return not (-16 <= s <= 64)
    if isinstance(s, float):
        return s not in (0.5, -0.5, 1.0, -1.0, 2.0, -2.0, 4.0, -4.0, 0.0)
    s = str(s)
    if s in ('vcc', 'exec', 'm0', 'scc'): return False
    if re.match(r'^-?[vas]\d', s) or re.match(r'^-?[vas]\[', s): return False
    try:
        v = int(s, 0); return not (-16 <= v <= 64)
    except ValueError:
        pass
    try:
        return float(s) not in (0.5, -0.5, 1.0, -1.0, 2.0, -2.0, 4.0, -4.0, 0.0)
    except ValueError:
        return True

def build_deps(ins):
    lastw = {}; readers = {}
    prev_bb = None
    for n, i in enumerate(ins):
        i.idx = n
        for r in i.rd:
            if r in lastw: i.preds.add(lastw[r])
        for r in i.wr:
            if r in lastw: i.preds.add(lastw[r])
            for q in readers.get(r, ()): i.preds.add(q)
        for r in i.rd:
            readers.setdefault(r, []).append(i)
        for r in i.wr:
            lastw[r] = i; readers[r] = []
        if i.backbone:
            if prev_bb is not None: i.preds.add(prev_bb)
            prev_bb = i
        for q in i.xpreds: i.preds.add(q)
        i.preds.discard(i)
    for i in ins:
        for p in i.preds: p.succs.add(i)

def schedule(ins, gap_budget=24, mfma_res_lat=64, lds_lat=140, verbose=False, vm_space=96, vm_force=False):
    build_deps(ins)
    bb = [i for i in ins if i.backbone]
    for k, b in enumerate(bb): b.deadline = k
    for i in reversed(ins):
        if i.backbone: continue
        d = 10 ** 9
        for s in i.succs:
            if s.deadline is not None: d = min(d, s.deadline)
        i.deadline = d
    out = []
    st = {'t': 0, 'free': 0, 'lastvm': -10**9, 'nbb': 0}
    pend = [i for i in ins if not i.backbone]
    rel = {}
    for i in ins:
        if i.backbone:
            rel[i] = i.deadline
        else:
            rel[i] = max([rel[p] for p in i.preds], default=-1)
    for i in pend:
        if i.pin is not None:
            i.deadline = min(i.deadline, rel[i] + i.pin)
    for i in reversed(ins):
        if i.backbone: continue
        for s in i.succs:
            i.deadline = min(i.deadline, s.deadline)
    def cls(i):
        if i.kind == 'lds' and i.bonus > 0: return 0
        if i.kind == 'vmem': return 1
        if i.kind in ('vmem_st', 'valu') and i.bonus > 0: return 1
        if i.kind == 'salu': return 1
        if i.kind == 'lds': return 2
        return 3
    def key(i): return (cls(i), i.deadline, i.idx)
    import heapq
    npred = {i: len(i.preds) for i in ins}
    ready = []
    for i in pend:
        if npred[i] == 0: ready.append(i)
    def lat_ok(i):
        if i.kind in ('vmem', 'vmem_st') and st['nbb'] > 0 and st['t'] < st['lastvm'] + vm_space: return False
        for p in i.preds:
            if p.kind == 'mfma' and i.kind != 'mfma' and (set(p.wr) & (set(i.rd) | set(i.wr))):
                if st['t'] < p.t + mfma_res_lat: return False
            if p.kind == 'mfma' and i.kind in ('valu', 'trans', 'perm') and (set(p.srcc) & set(i.wr)):
                if st['t'] < p.t + 40: return False
            if p.kind == 'trans' and out and out[-1] is p and i.kind != 'trans': return False
        return True
    def emit(i):
        assert not i.emitted
        if i.kind == 'mfma':
            st['t'] = max(st['t'], st['free'])
            i.t = st['t']; st['free'] = st['t'] + 4 * i.passes; st['t'] += i.cost
        else:
            i.t = st['t']; st['t'] += i.cost
        if i.kind in ('vmem', 'vmem_st'): st['lastvm'] = i.t
        if i.kind == 'mfma': st['nbb'] += 1
        i.emitted = True; out.append(i)
        if i in ready_set: ready_set.discard(i)
        for s in i.succs:
            npred[s] -= 1
            if npred[s] == 0 and not s.backbone: ready_set.add(s)
    ready_set = set(ready)
    def force(i):
        stack = [p for p in i.preds if not p.emitted]
        if stack:
            need = set()
            while stack:
                p = stack.pop()
                if p in need or p.emitted: continue
                need.add(p); stack += [q for q in p.preds if not q.emitted]
            for p in sorted(need, key=lambda x: x.idx):
                assert not p.backbone or p.emitted, "backbone order violation"
                emit(p)
        emit(i)
    for b in bb:
        while True:
            room = st['free'] - st['t']
            if b.kind != 'mfma': room = 0
            cands = [i for i in ready_set if (i.cost <= room or (vm_force and st['nbb'] > 0 and cls(i) == 1)) and lat_ok(i)]
            if not cands:
                break
            c = min(cands, key=key)
            emit(c)
        force(b)
    rest = [i for i in ins if not i.emitted]
    for i in sorted(rest, key=lambda x: x.idx):
        if not i.emitted: force(i)
    if verbose: print("sched est cycles", st['t'], file=sys.stderr)
    return out

def insert_waits(seq, merge_lat=160):
    out = []
    vm = []
    lg = []
    for i in seq:
        touched = set(i.rd) | set(i.wr)
        nv = None; nl = None
        for k, p in enumerate(vm):
            if p.kind == 'vmem' and (set(p.wr) & (set(i.rd) if i.kind == 'vmem' else touched)): nv = len(vm) - 1 - k
            if p.kind == 'vmem_st' and (set(p.wr) & set(i.rd)) and i.kind != 'valu': nv = len(vm) - 1 - k
        for k, p in enumerate(lg):
            if set(p.wr) & touched: nl = len(lg) - 1 - k
        if nv is not None or nl is not None:
            parts = []
            if nv is not None:
                nv = min(nv, 63); parts.append("vmcnt(%d)" % nv); vm = vm[len(vm) - nv:] if nv else []
            if nl is not None:
                if merge_lat is not None and i.t is not None:
                    while nl > 0 and lg[len(lg) - nl].t is not None and lg[len(lg) - nl].t + merge_lat <= i.t: nl -= 1
                nl = min(nl, 15); parts.append("lgkmcnt(%d)" % nl); lg = lg[len(lg) - nl:] if nl else []
            out.append(Inst("s_waitcnt " + " ".join(parts), 'wait', size=4))
        out.append(i)
        if i.kind in ('vmem', 'vmem_st'): vm.append(i)
        if i.kind == 'lds':
            lg.append(i)
    return out

def states(i):
    if i.text.startswith('s_nop'):
        return int(i.text.split()[1]) + 1
    return 1

def insert_nops(seq):
    out = []
    VAL = ('valu', 'trans', 'perm')
    XDL_RD = {4: 8, 8: 12}
    XDL_OVL = {4: 6, 8: 10}
    XDL_WAR = {4: 3, 8: 7}
    def need_for(i):
        need = 0
        dist = 0
        for p in reversed(out[-40:]):
            req = 0
            pw = set(p.wr)
            if p.kind in VAL:
                if i.kind == 'mfma' and pw & set(i.rd): req = max(req, 2)
                if i.kind == 'perm' and pw & (set(i.rd)): req = max(req, 2)
                if p.kind == 'trans' and i.kind in ('valu', 'perm') and pw & set(i.rd): req = max(req, 1)
                if i.text.startswith('v_readfirstlane') or i.text.startswith('v_readlane'):
                    if pw & set(i.rd): req = max(req, 1)
                sw = {r for r in pw if r == 'vcc' or (isinstance(r, tuple) and r[0] == 's')}
                if sw & set(i.rd):
                    if i.kind in VAL: req = max(req, 2)
                    if i.kind in ('vmem', 'vmem_st'): req = max(req, 5)
            if p.kind == 'mfma':
                if i.kind == 'mfma':
                    if pw & set(i.srcab): req = max(req, XDL_RD[p.passes])
                    ov = pw & set(i.srcc)
                    if ov and not (set(i.srcc) == pw and i.passes == p.passes): req = max(req, XDL_OVL[p.passes])
                    if (pw & set(i.wr)) and not (set(i.srcc) == pw): req = max(req, XDL_OVL[p.passes])
                elif i.kind in VAL or i.kind in ('vmem', 'vmem_st', 'lds'):
                    if pw & (set(i.rd) | set(i.wr)): req = max(req, XDL_RD[p.passes])
                if i.kind in VAL and set(p.srcc) & set(i.wr): req = max(req, XDL_WAR[p.passes])
            if p.kind == 'vmem_st' and i.kind in VAL + ('lds', 'vmem') and (set(p.rd) & set(i.wr)):
                req = max(req, 2)
            if p.kind == 'salu' and 'm0' in pw and i.kind == 'vmem' and 'm0' in i.rd: req = max(req, 1)
            need = max(need, req - dist)
            dist += states(p)
        return need
    for i in seq:
        n = need_for(i)
        while n > 0:
            k = min(n, 16)
            out.append(Inst("s_nop %d" % (k - 1), 'nop', size=4)); n -= k
        out.append(i)
    return out

def align8(seq, start=0):
    pos = start
    run = []
    nmis = 0
    for i in seq:
        if i.kind == 'blob':
            pos = 0; run = []; continue
        if i.size == 8:
            if pos % 8 == 4:
                c = [j for j in run if j.e64able]
                if c:
                    j = c[-1]
                    op, rest = j.text.split(' ', 1)
                    j.text = op + '_e64 ' + rest; j.size = 8; j.e64able = False
                    pos += 4
                else:
                    nmis += 1
            run = []
        else:
            run.append(i)
        pos += i.size
    return nmis, pos

def text_of(seq):
    return "".join(" " + i.text + "\n" for i in seq)
```
